```python
import torch

def _softmax(x, axis=-1):
    return torch.softmax(x, dim=axis)
def _gelu(x):
    return torch.nn.functional.gelu(x, approximate="tanh")
def _silu(x):
    return torch.nn.functional.silu(x)
def _sigmoid(x):
    return torch.sigmoid(x)
def _layernorm(x, axis=-1, eps=1e-5):
    m = x.mean(dim=axis, keepdim=True)
    v = x.var(dim=axis, keepdim=True, unbiased=False)
    return (x - m) / torch.sqrt(v + eps)
def _scatter_add(tgt, idx, src, axis=0):
    return tgt.clone().index_add_(axis, idx, src)
def _segment_sum(src, seg, n):
    out = torch.zeros((n,) + src.shape[1:], dtype=src.dtype)
    return out.index_add_(0, seg, src)
def _pad(x, pw):
    flat = tuple(v for pair in reversed(pw) for v in pair)
    return torch.nn.functional.pad(x, flat)

kernel_name = 'interleave_layers__sliding_block_cached__dense_activation_gelu__decode'

def setup_inputs():

    _w = (lambda a: (lambda t: t.to(torch.bfloat16) if t.is_floating_point() else t)(torch.as_tensor(a)))
    def _A_setup():
        B, Sq, D = 1, 1, 512
        Hq, Hkv, Sk, Dh = 32, 8, 65536, 128
        assert Hq % Hkv == 0, (Hq, Hkv)
        return {
            "x": _w((lambda *s: torch.randn(*s, dtype=torch.bfloat16) * 0.05)(B, Sq, D)),
            "k_cache": _w((lambda *s: torch.randn(*s, dtype=torch.bfloat16) * 0.8)(B, Hkv, Sk, Dh)),
            "v_cache": _w((lambda *s: torch.randn(*s, dtype=torch.bfloat16) * 1.6)(B, Hkv, Sk, Dh)),
            "wq": _w((lambda *s: torch.randn(*s, dtype=torch.bfloat16) * 0.8)(D, Hq * Dh) * (D ** -0.5)),
            "wo": _w((lambda *s: torch.randn(*s, dtype=torch.bfloat16) * 1.6)(Hq * Dh, D) * ((Hq * Dh) ** -0.5)),
        }
    _A_in = _A_setup()

    def _B_setup():
        B, S, D, F = 1, 1, 512, 1792
        return {
            "x": _w((lambda *s: torch.randn(*s, dtype=torch.bfloat16) * 0.05)(B, S, D)),
            "w1": _w((lambda *s: torch.randn(*s, dtype=torch.bfloat16) * 1.6)(D, F) * (D ** -0.5)),
            "b1": _w((lambda *s: torch.randn(*s, dtype=torch.bfloat16) * 1.6)(F) * 0.01),
            "w2": _w((lambda *s: torch.randn(*s, dtype=torch.bfloat16) * 0.2)(F, D) * (F ** -0.5)),
            "b2": _w((lambda *s: torch.randn(*s, dtype=torch.bfloat16) * 0.2)(D) * 0.01),
        }
    _B_in = _B_setup()

    return {
        "A_x": _A_in["x"],
        "A_k_cache": _A_in["k_cache"],
        "A_v_cache": _A_in["v_cache"],
        "A_wq": _A_in["wq"],
        "A_wo": _A_in["wo"],
        "B_x": _B_in["x"],
        "B_w1": _B_in["w1"],
        "B_b1": _B_in["b1"],
        "B_w2": _B_in["w2"],
        "B_b2": _B_in["b2"],
    }

def reference(A_x, A_k_cache, A_v_cache, A_wq, A_wo, B_x, B_w1, B_b1, B_w2, B_b2):
    def _A_ref(x, k_cache, v_cache, wq, wo):
        B, Sq, D = x.shape
        Hq, Dh = 32, 128
        Hkv, Sk = k_cache.shape[1], k_cache.shape[2]
        W = min(4096, max(256, Sk // 4))
        rep = Hq // Hkv
        q = (lambda x, *d: x.permute(*d))((x @ wq).reshape(B, Sq, Hq, Dh), 0, 2, 1, 3)
        k = (lambda x, n, axis: torch.repeat_interleave(x, n, dim=axis))(k_cache[:, :, Sk - W:, :], rep, axis=1)
        v = (lambda x, n, axis: torch.repeat_interleave(x, n, dim=axis))(v_cache[:, :, Sk - W:, :], rep, axis=1)
        scores = torch.einsum("bhqd,bhkd->bhqk", q, k) * (Dh ** -0.5)
        p = _softmax(scores, axis=-1)
        o = torch.einsum("bhqk,bhkd->bhqd", p, v)
        return (lambda x, *d: x.permute(*d))(o, 0, 2, 1, 3).reshape(B, Sq, Hq * Dh) @ wo

    def _B_ref(x, w1, b1, w2, b2):
        h = torch.einsum("bsd,df->bsf", x, w1) + b1
        h = _gelu(h)
        return torch.einsum("bsf,fd->bsd", h, w2) + b2

    x = A_x
    x = x + _A_ref(_layernorm(x, axis=-1), A_k_cache, A_v_cache, A_wq, A_wo)
    x = x + _B_ref(_layernorm(x, axis=-1), B_w1, B_b1, B_w2, B_b2)
    x = x + _A_ref(_layernorm(x, axis=-1), A_k_cache, A_v_cache, A_wq, A_wo)
    x = x + _B_ref(_layernorm(x, axis=-1), B_w1, B_b1, B_w2, B_b2)
    return x
```

```python
import re

TRANS = ("v_exp_f32", "v_log_f32", "v_rcp_f32", "v_rsq_f32", "v_sqrt_f32", "v_sin_f32", "v_cos_f32")


def _regs(tok):
    tok = tok.strip()
    tok = tok.lstrip("-")
    m = re.fullmatch(r"abs\((.*)\)", tok)
    if m:
        tok = m.group(1)
    m = re.fullmatch(r"([vs])(\d+)", tok)
    if m:
        return {(m.group(1), int(m.group(2)))}
    m = re.fullmatch(r"([vs])\[(\d+):(\d+)\]", tok)
    if m:
        return {(m.group(1), i) for i in range(int(m.group(2)), int(m.group(3)) + 1)}
    if tok in ("vcc", "vcc_lo", "vcc_hi"):
        return {("vcc", 0)}
    if tok in ("exec", "exec_lo", "exec_hi"):
        return {("exec", 0)}
    return set()


class Rec:
    pass


class Asm:
    def __init__(self):
        self.lines = []
        self.hist = []
        self.pos = 0
        self.nlabel = 0

    def raw(self, text):
        self.lines.append(text)

    def comment(self, text):
        self.lines.append("    ; " + text)

    def newlabel(self, base="L"):
        self.nlabel += 1
        return "%s_%d" % (base, self.nlabel)

    def _flush(self):
        need = 0
        for pos, r in self.hist[-24:]:
            d = self.pos - pos - 1
            req = 0
            if r.mfma:
                req = 8
            elif r.valu:
                req = 5 if r.swr else 2
            elif r.wstore:
                req = 2
            need = max(need, req - d)
        if need > 0:
            self._nop(need)

    def _nop(self, n):
        while n > 0:
            k = min(n, 16)
            self.lines.append("    s_nop %d" % (k - 1))
            self.pos += k
            n -= k

    def nop(self, n):
        self._nop(n)

    def label(self, name):
        self._flush()
        self.lines.append(name + ":")

    def parse(self, text):
        r = Rec()
        parts = text.split(None, 1)
        op = parts[0]
        rest = parts[1] if len(parts) > 1 else ""
        ops = [o.strip() for o in rest.split(",")]
        toks = []
        mods = []
        for i, o in enumerate(ops):
            w = o.split()
            if not w:
                continue
            toks.append(w[0])
            mods += w[1:]
        r.op = op
        r.mfma = op.startswith("v_mfma")
        r.valu = op.startswith("v_") and not r.mfma
        r.trans = any(op.startswith(t) for t in TRANS)
        r.dpp = any(m.startswith("row_") or m.startswith("quad_perm") for m in mods)
        r.perml = op.startswith("v_permlane")
        r.rdlane = op.startswith("v_readlane") or op.startswith("v_readfirstlane")
        r.vmem = op.startswith("buffer_") or op.startswith("global_")
        r.ds = op.startswith("ds_")
        r.store = (r.vmem and "store" in op) or (r.ds and "write" in op)
        r.wstore = r.vmem and "store" in op and ("x4" in op or "x3" in op)
        r.branch = op.startswith("s_cbranch") or op.startswith("s_branch") or op == "s_endpgm" or op == "s_barrier"
        wr = set()
        rd = set()
        if r.store:
            for t in toks:
                rd |= _regs(t)
            r.sdata = _regs(toks[0]) if r.vmem else set()
        elif r.perml:
            for t in toks:
                rd |= _regs(t)
                wr |= _regs(t)
        elif op.startswith("s_cmp") or op.startswith("s_waitcnt") or r.branch or op in ("s_sleep", "s_nop", "s_setprio"):
            for t in toks:
                rd |= _regs(t)
        else:
            if toks:
                wr |= _regs(toks[0])
            for t in toks[1:]:
                rd |= _regs(t)
            if op.startswith("v_fmac") or "d16" in op or op.startswith("v_dot2c"):
                rd |= _regs(toks[0])
            if op.startswith("v_cndmask") and len(toks) == 3:
                rd |= {("vcc", 0)}
            if op.startswith("v_add_co") or op.startswith("v_addc_co"):
                wr |= _regs(toks[1])
        r.wr = wr
        r.rd = rd
        r.swr = {x for x in wr if x[0] in ("s", "vcc")} if r.valu else set()
        if r.mfma:
            r.D = _regs(toks[0])
            r.A = _regs(toks[1])
            r.B = _regs(toks[2])
            r.C = _regs(toks[3])
        return r

    def __call__(self, text):
        r = self.parse(text)
        if r.branch:
            self._flush()
        need = 0
        for pos, p in self.hist[-24:]:
            d = self.pos - pos - 1
            req = 0
            if p.valu:
                vw = {x for x in p.wr if x[0] == "v"}
                if r.mfma and (vw & r.rd):
                    req = max(req, 2)
                if (r.dpp or r.perml) and (vw & r.rd):
                    req = max(req, 2)
                if r.rdlane and (vw & r.rd):
                    req = max(req, 1)
                if p.trans and r.valu and (vw & r.rd):
                    req = max(req, 1)
                if p.swr:
                    if r.vmem and (p.swr & r.rd):
                        req = max(req, 5)
                    if r.valu and (p.swr & r.rd):
                        req = max(req, 2)
            if p.mfma:
                if r.mfma:
                    if p.D & (r.A | r.B):
                        req = max(req, 8)
                    if p.D & r.C and p.D != r.C:
                        req = max(req, 6)
                    if p.D & r.D and not (p.D & r.C):
                        req = max(req, 8)
                else:
                    if p.D & (r.rd | r.wr):
                        req = max(req, 8)
                    if r.valu and (p.C & r.wr):
                        req = max(req, 3)
            if p.wstore and (p.sdata & r.wr):
                req = max(req, 2)
            need = max(need, req - d)
        if need > 0:
            self._nop(need)
        self.lines.append("    " + text)
        self.hist.append((self.pos, r))
        self.pos += 1

    def text(self):
        return "\n".join(self.lines) + "\n"
```

```python
import sys, os
sys.path.insert(0, os.path.dirname(__file__))
from asmlib import Asm

NAME = "interleave_layers__sliding_block_cached__dense_activation_gelu__decode"
OUT = "cdna_kernels/%s.s" % NAME

N_WQ, N_ATT, N_WO, N_FFN = 64, 256, 256, 56
B_WQ = 0
B_ATT = B_WQ + N_WQ
B_WO = B_ATT + N_ATT
B_FFN = B_WO + N_WO
NWG = B_FFN + N_FFN

GDELTA = 0x4000000
def LB(l): return l * 0x1000000
QS, OS, XP, YP, XB1, XB2, FP, AP = 0x0, 0x10000, 0x20000, 0x30000, 0x40000, 0x41000, 0x80000, 0x100000
LIMIT = 400000

LOG2E = 0x3fb8aa3b
SCALE = 0x3db504f3

a = Asm()
A = a

S_NONCE, S_G, S_IDX, S_W, S_CNT, S_T = "s30", "s31", "s32", "s33", "s34", "s35"
WS = "s[36:39]"
SA, SB, SC, SD = "s[40:43]", "s[44:47]", "s[48:51]", "s[64:67]"
DBG = "s[52:55]"
S_OFF, S_L, S_GOFF = "s56", "s57", "s58"
S_PLO, S_PHI = "s60", "s61"
S_T2, S_T3 = "s59", "s68"
SM = "s[70:71]"


def v(n, k=1):
    return "v%d" % n if k == 1 else "v[%d:%d]" % (n, n + k - 1)


def srd(dst, ptr, nbytes):
    d = int(dst[2:].split(":")[0])
    A("s_mov_b32 s%d, s%d" % (d, ptr))
    A("s_and_b32 s%d, s%d, 0xffff" % (d + 1, ptr + 1))
    A("s_mov_b32 s%d, 0x%x" % (d + 2, nbytes))
    A("s_mov_b32 s%d, 0x00020000" % (d + 3))


def tagcheck(tags, t1, t2):
    if len(tags) == 1:
        A("v_cmp_ne_u32 vcc, %s, %s" % (S_NONCE, v(tags[0])))
        return
    if len(tags) == 2:
        A("v_cmp_ne_u32 vcc, %s, %s" % (S_NONCE, v(tags[0])))
        A("v_cmp_ne_u32 %s, %s, %s" % (SM, S_NONCE, v(tags[1])))
        A("s_or_b64 vcc, vcc, %s" % SM)
        return
    A("v_min3_u32 %s, %s, %s, %s" % (v(t1), v(tags[0]), v(tags[1]), v(tags[2])))
    A("v_max3_u32 %s, %s, %s, %s" % (v(t2), v(tags[0]), v(tags[1]), v(tags[2])))
    rest = tags[3:]
    while rest:
        if len(rest) >= 2:
            A("v_min3_u32 %s, %s, %s, %s" % (v(t1), v(t1), v(rest[0]), v(rest[1])))
            A("v_max3_u32 %s, %s, %s, %s" % (v(t2), v(t2), v(rest[0]), v(rest[1])))
            rest = rest[2:]
        else:
            A("v_min_u32 %s, %s, %s" % (v(t1), v(t1), v(rest[0])))
            A("v_max_u32 %s, %s, %s" % (v(t2), v(t2), v(rest[0])))
            rest = rest[1:]
    A("v_cmp_ne_u32 vcc, %s, %s" % (S_NONCE, v(t1)))
    A("v_cmp_ne_u32 %s, %s, %s" % (SM, S_NONCE, v(t2)))
    A("s_or_b64 vcc, vcc, %s" % SM)


def poll(emit_loads, tags, t1, t2, local):
    lp = a.newlabel("Lp")
    ld = a.newlabel("Ld")
    A("s_mov_b32 %s, 0" % S_CNT)
    if local:
        A("s_add_u32 %s, %s, 0x%x" % (S_GOFF, S_L, GDELTA))
    a.label(lp)
    if local:
        A("s_and_b32 %s, %s, 15" % (S_T, S_CNT))
        A("s_cmp_eq_u32 %s, 15" % S_T)
        A("s_cselect_b32 %s, %s, %s" % (S_OFF, S_GOFF, S_L))
    emit_loads()
    A("s_waitcnt vmcnt(0)")
    tagcheck(tags, t1, t2)
    A("s_cbranch_vccz %s" % ld)
    A("s_add_u32 %s, %s, 1" % (S_CNT, S_CNT))
    A("s_cmp_lt_u32 %s, %d" % (S_CNT, LIMIT))
    A("s_cbranch_scc1 %s" % lp)
    a.label(ld)


def get_nonce(t):
    lp = a.newlabel("Ln")
    ld = a.newlabel("Lnd")
    A("s_mov_b32 %s, 0" % S_CNT)
    A("v_mov_b32 %s, 0" % v(t + 1))
    a.label(lp)
    A("buffer_load_dword %s, %s, %s, 0 offen sc1" % (v(t), v(t + 1), DBG))
    A("s_waitcnt vmcnt(0)")
    A("v_readfirstlane_b32 %s, %s" % (S_NONCE, v(t)))
    A("s_cmp_lg_u32 %s, 0" % S_NONCE)
    A("s_cbranch_scc1 %s" % ld)
    A("s_add_u32 %s, %s, 1" % (S_CNT, S_CNT))
    A("s_cmp_lt_u32 %s, %d" % (S_CNT, LIMIT))
    A("s_cbranch_scc1 %s" % lp)
    a.label(ld)


def rowreduce(op, regs):
    for sh in (8, 4, 2, 1):
        for r in regs:
            A("%s_dpp %s, %s, %s row_ror:%d row_mask:0xf bank_mask:0xf" % (op, v(r), v(r), v(r), sh))


def xrow16(op, regs, tmps):
    for r, t in zip(regs, tmps):
        A("v_mov_b32 %s, %s" % (v(t), v(r)))
    for r, t in zip(regs, tmps):
        A("v_permlane16_swap_b32 %s, %s" % (v(r), v(t)))
    for r, t in zip(regs, tmps):
        A("%s %s, %s, %s" % (op, v(r), v(r), v(t)))


def xrow32(op, regs, tmps):
    for r, t in zip(regs, tmps):
        A("v_mov_b32 %s, %s" % (v(t), v(r)))
    for r, t in zip(regs, tmps):
        A("v_permlane32_swap_b32 %s, %s" % (v(r), v(t)))
    for r, t in zip(regs, tmps):
        A("%s %s, %s, %s" % (op, v(r), v(r), v(t)))


def rbf16_2(ra, rb, t):
    A("v_cvt_pk_bf16_f32 %s, %s, %s" % (v(t), v(ra), v(rb)))
    A("v_lshlrev_b32 %s, 16, %s" % (v(ra), v(t)))
    A("v_and_b32 %s, 0xffff0000, %s" % (v(rb), v(t)))


def rbf16_1(ra):
    A("v_cvt_pk_bf16_f32 %s, %s, %s" % (v(ra), v(ra), v(ra)))
    A("v_lshlrev_b32 %s, 16, %s" % (v(ra), v(ra)))


def publish_local(instr, data, voff, base_expr_sgpr):
    A("%s %s, %s, %s, %s offen" % (instr, data, voff, WS, base_expr_sgpr))
    A("s_add_u32 %s, %s, 0x%x" % (S_T2, base_expr_sgpr, GDELTA))
    A("%s %s, %s, %s, %s offen sc1" % (instr, data, voff, WS, S_T2))


L_STATS, L_Y, L_RED, L_H = 0, 64, 2048, 3328


def layernorm(xa, xb, yf, T, vlds_y_w, vlds_y_r, vlds_st):
    s1, s2 = T, T + 1
    A("v_add_f32 %s, %s, %s" % (v(s1), v(xa), v(xb)))
    A("v_mul_f32 %s, %s, %s" % (v(s2), v(xa), v(xa)))
    A("v_fmac_f32 %s, %s, %s" % (v(s2), v(xb), v(xb)))
    rowreduce("v_add_f32", [s1, s2])
    xrow16("v_add_f32", [s1, s2], [T + 2, T + 3])
    xrow32("v_add_f32", [s1, s2], [T + 2, T + 3])
    A("ds_write_b64 %s, %s" % (v(vlds_st), v(s1, 2)))
    A("s_waitcnt lgkmcnt(0)")
    A("s_barrier")
    A("v_mov_b32 %s, 0" % v(T + 9))
    A("ds_read_b128 %s, %s offset:%d" % (v(T, 4), v(T + 9), L_STATS))
    A("ds_read_b128 %s, %s offset:%d" % (v(T + 4, 4), v(T + 9), L_STATS + 16))
    A("s_waitcnt lgkmcnt(0)")
    A("v_add_f32 %s, %s, %s" % (v(T), v(T), v(T + 2)))
    A("v_add_f32 %s, %s, %s" % (v(T + 1), v(T + 1), v(T + 3)))
    A("v_add_f32 %s, %s, %s" % (v(T + 4), v(T + 4), v(T + 6)))
    A("v_add_f32 %s, %s, %s" % (v(T + 5), v(T + 5), v(T + 7)))
    A("v_add_f32 %s, %s, %s" % (v(T), v(T), v(T + 4)))
    A("v_add_f32 %s, %s, %s" % (v(T + 1), v(T + 1), v(T + 5)))
    A("v_mul_f32 %s, 0x3b000000, %s" % (v(T), v(T)))
    A("v_mul_f32 %s, 0x3b000000, %s" % (v(T + 1), v(T + 1)))
    A("v_fma_f32 %s, -%s, %s, %s" % (v(T + 1), v(T), v(T), v(T + 1)))
    A("v_max_f32 %s, 0, %s" % (v(T + 1), v(T + 1)))
    rbf16_2(T, T + 1, T + 2)
    A("v_add_f32 %s, 0x3727c5ac, %s" % (v(T + 1), v(T + 1)))
    A("v_sub_f32 %s, %s, %s" % (v(T + 4), v(xa), v(T)))
    A("v_sub_f32 %s, %s, %s" % (v(T + 5), v(xb), v(T)))
    rbf16_1(T + 1)
    A("v_sqrt_f32 %s, %s" % (v(T + 1), v(T + 1)))
    rbf16_2(T + 4, T + 5, T + 2)
    rbf16_1(T + 1)
    A("v_rcp_f32 %s, %s" % (v(T + 1), v(T + 1)))
    A("v_mul_f32 %s, %s, %s" % (v(T + 4), v(T + 4), v(T + 1)))
    A("v_mul_f32 %s, %s, %s" % (v(T + 5), v(T + 5), v(T + 1)))
    A("v_cvt_pk_bf16_f32 %s, %s, %s" % (v(T + 2), v(T + 4), v(T + 5)))
    A("ds_write_b32 %s, %s" % (v(vlds_y_w), v(T + 2)))
    A("s_waitcnt lgkmcnt(0)")
    for j in range(4):
        A("ds_read_b128 %s, %s offset:%d" % (v(yf + 4 * j, 4), v(vlds_y_r), 64 * j))
    A("s_waitcnt lgkmcnt(0)")


def dense_lds_addrs(vw, vr, vst):
    A("s_lshl_b32 %s, %s, 8" % (S_T, S_W))
    A("s_add_u32 %s, %s, %d" % (S_T, S_T, L_Y))
    A("v_lshlrev_b32 %s, 2, v1" % v(vw))
    A("v_add_u32 %s, %s, %s" % (v(vw), S_T, v(vw)))
    A("v_lshlrev_b32 %s, 4, v2" % v(vr))
    A("v_add_u32 %s, %s, %s" % (v(vr), S_T, v(vr)))
    A("s_lshl_b32 %s, %s, 3" % (S_T, S_W))
    A("v_mov_b32 %s, %s" % (v(vst), S_T))


def poll_xpartials(slab, xold_slab, P, XO, vt16, vt8, t1, t2):
    def loads():
        for g in range(8):
            A("s_mov_b32 %s, 0x%x" % (S_OFF, slab + g * 0x1000))
            A("buffer_load_dwordx4 %s, %s, %s, %s offen sc1" % (v(P + 4 * g, 4), v(vt16), WS, S_OFF))
        if xold_slab is not None:
            A("s_mov_b32 %s, 0x%x" % (S_OFF, xold_slab))
            A("buffer_load_dwordx2 %s, %s, %s, %s offen sc1" % (v(XO, 2), v(vt8), WS, S_OFF))
    tags = []
    for g in range(8):
        tags += [P + 4 * g + 1, P + 4 * g + 3]
    if xold_slab is not None:
        tags.append(XO + 1)
    poll(loads, tags, t1, t2, False)


def sum_partials(P, ra, rb):
    A("v_add_f32 %s, %s, %s" % (v(ra), v(P), v(P + 4)))
    A("v_add_f32 %s, %s, %s" % (v(rb), v(P + 2), v(P + 6)))
    for g in range(2, 8):
        A("v_add_f32 %s, %s, %s" % (v(ra), v(ra), v(P + 4 * g)))
        A("v_add_f32 %s, %s, %s" % (v(rb), v(rb), v(P + 4 * g + 2)))


def prologue():
    A("s_cmp_ge_u32 s2, %d" % NWG)
    A("s_cbranch_scc1 L_end")
    A("s_load_dwordx16 s[4:19], s[0:1], 0")
    A("s_load_dwordx8 s[20:27], s[0:1], 64")
    A("s_load_dwordx2 s[28:29], s[0:1], 96")
    A("v_and_b32 v1, 63, v0")
    A("v_lshrrev_b32 v2, 4, v1")
    A("v_and_b32 v3, 15, v0")
    A("v_lshrrev_b32 v4, 6, v0")
    A("v_readfirstlane_b32 %s, v4" % S_W)
    A("s_and_b32 %s, s2, 7" % S_G)
    A("s_mov_b32 %s, 0x05040100" % S_PLO)
    A("s_mov_b32 %s, 0x07060302" % S_PHI)
    A("s_waitcnt lgkmcnt(0)")
    srd(WS, 28, 0x20000000)
    srd(DBG, 26, 256)
    A("s_cmp_ge_u32 s2, %d" % B_FFN)
    A("s_cbranch_scc1 L_ffn")
    A("s_cmp_ge_u32 s2, %d" % B_WO)
    A("s_cbranch_scc1 L_wo")
    A("s_cmp_ge_u32 s2, %d" % B_ATT)
    A("s_cbranch_scc1 L_att")


def role_wq():
    a.comment("================= WQ role =================")
    S0 = 32
    R = [48, 64, 80, 96]
    P = 96
    XO = 30
    YF = 96
    ACC = 112
    T = 16
    VX, VB2 = 14, 15
    V_T4, V_T8, V_T16, V_W, VLW, VLR, VST, VRED_W, VRED_R = 5, 6, 7, 8, 9, 10, 11, 12, 13
    XA, XB_, B2A, B2B = 26, 27, 28, 29

    def frag(j, c):
        base = S0 if j == 0 else R[j - 1]
        return base + 4 * c

    lskip = a.newlabel("Lnn")
    A("s_or_b32 %s, s2, %s" % (S_T, S_W))
    A("s_cmp_lg_u32 %s, 0" % S_T)
    A("s_cbranch_scc1 %s" % lskip)
    A("s_memrealtime s[62:63]")
    A("s_waitcnt lgkmcnt(0)")
    A("s_or_b32 s62, s62, 1")
    A("v_mov_b32 v5, s62")
    A("v_mov_b32 v6, 0")
    A("buffer_store_dword v5, v6, %s, 0 offen sc1" % DBG)
    a.label(lskip)

    A("s_lshr_b32 %s, s2, 3" % S_IDX)
    srd(SA, 10, 0x400000)
    srd(SB, 4, 1024)
    srd(SC, 22, 1024)
    srd(SD, 24, 1024)
    A("v_lshlrev_b32 %s, 2, v0" % v(V_T4))
    A("v_lshlrev_b32 %s, 3, v0" % v(V_T8))
    A("v_lshlrev_b32 %s, 4, v0" % v(V_T16))
    A("buffer_load_dword %s, %s, %s, 0 offen" % (v(VX), v(V_T4), SB))
    A("buffer_load_dword %s, %s, %s, 0 offen" % (v(VB2), v(V_T4), SC))
    A("v_lshlrev_b32 %s, 16, v2" % v(V_W))
    A("v_lshl_add_u32 %s, v3, 3, %s" % (v(V_W), v(V_W)))
    A("s_lshl_b32 %s, %s, 20" % (S_OFF, S_W))
    A("s_lshl_b32 %s, %s, 10" % (S_T, S_G))
    A("s_add_u32 %s, %s, %s" % (S_OFF, S_OFF, S_T))
    A("s_lshl_b32 %s, %s, 7" % (S_T, S_IDX))
    A("s_add_u32 %s, %s, %s" % (S_OFF, S_OFF, S_T))
    for j in range(4):
        for i in range(8):
            A("s_add_u32 %s, %s, 0x%x" % (S_T, S_OFF, (32 * j + i) * 8192))
            A("buffer_load_dwordx2 %s, %s, %s, %s offen" % (v(R[j] + 2 * i, 2), v(V_W), SA, S_T))
    dense_lds_addrs(VLW, VLR, VST)
    A("s_lshl_b32 %s, %s, 8" % (S_T, S_W))
    A("s_add_u32 %s, %s, %d" % (S_T, S_T, L_RED))
    A("v_lshlrev_b32 %s, 4, v3" % v(VRED_W))
    A("v_add_u32 %s, %s, %s" % (v(VRED_W), S_T, v(VRED_W)))
    A("v_add_u32 %s, %d, %s" % (v(VRED_R), L_RED, v(V_T8)))
    get_nonce(T)
    for j in range(4):
        for p in range(4):
            A0, A1, B0, B1 = R[j] + 4 * p, R[j] + 4 * p + 1, R[j] + 4 * p + 2, R[j] + 4 * p + 3
            A("v_perm_b32 %s, %s, %s, %s" % (v(frag(j, 0) + p), v(B0), v(A0), S_PLO))
            A("v_perm_b32 %s, %s, %s, %s" % (v(frag(j, 1) + p), v(B0), v(A0), S_PHI))
            A("v_perm_b32 %s, %s, %s, %s" % (v(frag(j, 2) + p), v(B1), v(A1), S_PLO))
            A("v_perm_b32 %s, %s, %s, %s" % (v(frag(j, 3) + p), v(B1), v(A1), S_PHI))
    A("v_lshlrev_b32 %s, 16, %s" % (v(B2A), v(VB2)))
    A("v_and_b32 %s, 0xffff0000, %s" % (v(B2B), v(VB2)))

    def update_x(l):
        poll_xpartials(LB(l) + YP, LB(l) + XB1, P, XO, V_T16, V_T8, T, T + 1)
        sum_partials(P, XA, XB_)
        rbf16_2(XA, XB_, T + 2)
        A("v_add_f32 %s, %s, %s" % (v(XA), v(XA), v(B2A)))
        A("v_add_f32 %s, %s, %s" % (v(XB_), v(XB_), v(B2B)))
        rbf16_2(XA, XB_, T + 2)
        A("v_lshlrev_b32 %s, 16, %s" % (v(T + 3), v(XO)))
        A("v_and_b32 %s, 0xffff0000, %s" % (v(T + 4), v(XO)))
        A("v_add_f32 %s, %s, %s" % (v(XA), v(XA), v(T + 3)))
        A("v_add_f32 %s, %s, %s" % (v(XB_), v(XB_), v(T + 4)))
        rbf16_2(XA, XB_, T + 2)

    for l in range(2):
        if l == 0:
            A("v_lshlrev_b32 %s, 16, %s" % (v(XA), v(VX)))
            A("v_and_b32 %s, 0xffff0000, %s" % (v(XB_), v(VX)))
        else:
            update_x(0)
            lsk = a.newlabel("Lxb")
            A("s_cmp_lg_u32 s2, 0")
            A("s_cbranch_scc1 %s" % lsk)
            A("v_mov_b32 %s, %s" % (v(XO), v(T + 2)))
            A("v_mov_b32 %s, %s" % (v(XO + 1), S_NONCE))
            A("s_mov_b32 %s, 0x%x" % (S_OFF, LB(1) + XB2))
            A("buffer_store_dwordx2 %s, %s, %s, %s offen sc1" % (v(XO, 2), v(V_T8), WS, S_OFF))
            a.label(lsk)
        layernorm(XA, XB_, YF, T, VLW, VLR, VST)
        for j in range(4):
            for c in range(4):
                A("v_mfma_f32_16x16x32_bf16 %s, %s, %s, %s" % (
                    v(ACC + 4 * c, 4), v(YF + 4 * j, 4), v(frag(j, c), 4), "0" if j == 0 else v(ACC + 4 * c, 4)))
        for c in range(4):
            A("ds_write_b32 %s, %s offset:%d" % (v(VRED_W), v(ACC + 4 * c), 4 * c))
        A("s_waitcnt lgkmcnt(0)")
        A("s_barrier")
        lsk = a.newlabel("Lq")
        A("s_cmp_lg_u32 %s, 0" % S_W)
        A("s_cbranch_scc1 %s" % lsk)
        A("s_mov_b32 exec_lo, -1")
        A("s_mov_b32 exec_hi, 0")
        for w in range(4):
            A("ds_read_b64 %s, %s offset:%d" % (v(T + 2 * w, 2), v(VRED_R), 256 * w))
        A("s_waitcnt lgkmcnt(0)")
        A("v_add_f32 %s, %s, %s" % (v(T), v(T), v(T + 2)))
        A("v_add_f32 %s, %s, %s" % (v(T + 1), v(T + 1), v(T + 3)))
        A("v_add_f32 %s, %s, %s" % (v(T + 4), v(T + 4), v(T + 6)))
        A("v_add_f32 %s, %s, %s" % (v(T + 5), v(T + 5), v(T + 7)))
        A("v_add_f32 %s, %s, %s" % (v(T), v(T), v(T + 4)))
        A("v_add_f32 %s, %s, %s" % (v(T + 1), v(T + 1), v(T + 5)))
        A("v_cvt_pk_bf16_f32 %s, %s, %s" % (v(T), v(T), v(T + 1)))
        A("v_mov_b32 %s, %s" % (v(T + 1), S_NONCE))
        A("s_lshl_b32 %s, %s, 11" % (S_OFF, S_G))
        A("s_lshl_b32 %s, %s, 8" % (S_T, S_IDX))
        A("s_add_u32 %s, %s, %s" % (S_OFF, S_OFF, S_T))
        A("s_add_u32 %s, %s, 0x%x" % (S_OFF, S_OFF, LB(l) + QS))
        publish_local("buffer_store_dwordx2", v(T, 2), v(V_T8), S_OFF)
        A("s_mov_b64 exec, -1")
        a.label(lsk)
    A("s_cmp_lg_u32 s2, 0")
    A("s_cbranch_scc1 L_end")
    update_x(1)
    A("buffer_store_dword %s, %s, %s, 0 offen" % (v(T + 2), v(V_T4), SD))
    A("s_branch L_end")


def role_att():
    a.comment("================= ATT role =================")
    a.label("L_att")
    KF = 32
    VF = 64
    VIN = 96
    QP = 96
    QF = 16
    SC_ = 8
    PF = 4
    ACC = 96
    V_K, V_V, V_Q, V_T16, V_CO, V_CS, V_OS, V_LO, V_LST, V_LRD, V_LRS = (
        128, 129, 130, 131, 132, 133, 134, 135, 136, 137, 138)
    T = 16
    L_ST = 8192

    A("s_sub_u32 %s, s2, %d" % (S_IDX, B_ATT))
    A("s_lshr_b32 %s, %s, 3" % (S_IDX, S_IDX))
    srd(SA, 6, 0x8000000)
    srd(SB, 8, 0x8000000)
    A("v_lshlrev_b32 %s, 8, v3" % v(V_K))
    A("v_lshl_add_u32 %s, v2, 4, %s" % (v(V_K), v(V_K)))
    A("v_lshlrev_b32 %s, 10, v2" % v(V_V))
    A("v_lshl_add_u32 %s, v3, 4, %s" % (v(V_V), v(V_V)))
    A("s_lshl_b32 %s, %s, 24" % (S_OFF, S_G))
    A("s_lshl_b32 %s, %s, 15" % (S_T, S_IDX))
    A("s_add_u32 %s, %s, %s" % (S_OFF, S_OFF, S_T))
    A("s_lshl_b32 %s, %s, 13" % (S_T, S_W))
    A("s_add_u32 %s, %s, %s" % (S_OFF, S_OFF, S_T))
    A("s_add_u32 %s, %s, 0x%x" % (S_OFF, S_OFF, 61440 * 256))
    A("s_add_u32 %s, %s, 4096" % (S_T2, S_OFF))
    for Tt in range(2):
        for j in range(4):
            A("buffer_load_dwordx4 %s, %s, %s, %s offen offset:%d" % (
                v(KF + 16 * Tt + 4 * j, 4), v(V_K), SA, S_OFF if Tt == 0 else S_T2, 64 * j))
    for i in range(8):
        A("buffer_load_dwordx4 %s, %s, %s, %s offen offset:%d" % (
            v(VIN + 4 * i, 4), v(V_V), SB, S_OFF if i < 4 else S_T2, 256 * (i & 3)))
    A("v_lshrrev_b32 v4, 2, v3")
    A("v_add_u32 v4, v4, v3")
    A("v_and_b32 v4, 3, v4")
    A("v_lshlrev_b32 %s, 9, v4" % v(V_Q))
    A("v_lshl_add_u32 %s, v2, 5, %s" % (v(V_Q), v(V_Q)))
    A("v_lshlrev_b32 %s, 4, v0" % v(V_T16))
    A("v_and_b32 v4, 31, v1")
    A("v_lshlrev_b32 v4, 13, v4")
    A("v_lshrrev_b32 v5, 5, v1")
    A("s_lshl_b32 %s, %s, 7" % (S_T, S_IDX))
    A("s_lshl_b32 %s, %s, 5" % (S_T2, S_W))
    A("s_add_u32 %s, %s, %s" % (S_T, S_T, S_T2))
    A("v_lshl_add_u32 %s, v5, 4, v4" % v(V_CO))
    A("v_add_u32 %s, %s, %s" % (v(V_CO), S_T, v(V_CO)))
    A("s_lshr_b32 %s, %s, 3" % (S_T2, S_IDX))
    A("s_lshl_b32 %s, %s, 4" % (S_T2, S_T2))
    A("s_add_u32 %s, %s, 4096" % (S_T2, S_T2))
    A("v_add_u32 %s, %s, v4" % (v(V_CS), S_T2))
    A("s_lshr_b32 %s, %s, 1" % (S_T, S_T))
    A("v_lshlrev_b32 %s, 3, v5" % v(V_OS))
    A("v_add_u32 %s, %s, %s" % (v(V_OS), S_T, v(V_OS)))
    A("s_lshl_b32 %s, %s, 11" % (S_T, S_W))
    A("v_lshlrev_b32 %s, 9, v2" % v(V_LO))
    A("v_lshl_add_u32 %s, v3, 5, %s" % (v(V_LO), v(V_LO)))
    A("v_add_u32 %s, %s, %s" % (v(V_LO), S_T, v(V_LO)))
    A("s_lshl_b32 %s, %s, 2" % (S_T, S_W))
    A("s_add_u32 %s, %s, %d" % (S_T, S_T, L_ST))
    A("v_and_b32 v4, 3, v3")
    A("v_lshlrev_b32 %s, 4, v4" % v(V_LST))
    A("v_add_u32 %s, %s, %s" % (v(V_LST), S_T, v(V_LST)))
    A("v_lshlrev_b32 %s, 3, v0" % v(V_LRD))
    A("s_lshl_b32 %s, %s, 4" % (S_T, S_W))
    A("s_add_u32 %s, %s, %d" % (S_T, S_T, L_ST))
    A("v_mov_b32 %s, %s" % (v(V_LRS), S_T))
    get_nonce(T)
    for d in range(4):
        for p in range(4):
            Ar, Br = VIN + 4 * (2 * p) + d, VIN + 4 * (2 * p + 1) + d
            A("v_perm_b32 %s, %s, %s, %s" % (v(VF + 4 * (2 * d) + p), v(Br), v(Ar), S_PLO))
            A("v_perm_b32 %s, %s, %s, %s" % (v(VF + 4 * (2 * d + 1) + p), v(Br), v(Ar), S_PHI))

    for l in range(2):
        A("s_lshl_b32 %s, %s, 11" % (S_L, S_G))
        if LB(l) + QS:
            A("s_add_u32 %s, %s, 0x%x" % (S_L, S_L, LB(l) + QS))
        def loads():
            for j in range(4):
                for h in range(2):
                    A("buffer_load_dwordx4 %s, %s, %s, %s offen offset:%d sc1" % (
                        v(QP + 8 * j + 4 * h, 4), v(V_Q), WS, S_OFF, 128 * j + 16 * h))
        poll(loads, [QP + 2 * k + 1 for k in range(16)], 4, 5, True)
        for k in range(16):
            A("v_mov_b32 %s, %s" % (v(QF + k), v(QP + 2 * k)))
        for j in range(4):
            for Tt in range(2):
                A("v_mfma_f32_16x16x32_bf16 %s, %s, %s, %s" % (
                    v(SC_ + 4 * Tt, 4), v(KF + 16 * Tt + 4 * j, 4), v(QF + 4 * j, 4),
                    "0" if j == 0 else v(SC_ + 4 * Tt, 4)))
        A("s_mov_b32 %s, 0x%x" % (S_T, SCALE))
        for k in range(4):
            rbf16_2(SC_ + 2 * k, SC_ + 2 * k + 1, T + k)
        for k in range(8):
            A("v_mul_f32 %s, %s, %s" % (v(SC_ + k), S_T, v(SC_ + k)))
        for k in range(4):
            rbf16_2(SC_ + 2 * k, SC_ + 2 * k + 1, T + k)
        M_, L_ = T + 8, T + 9
        A("v_max3_f32 %s, %s, %s, %s" % (v(M_), v(SC_), v(SC_ + 1), v(SC_ + 2)))
        A("v_max3_f32 %s, %s, %s, %s" % (v(T), v(SC_ + 3), v(SC_ + 4), v(SC_ + 5)))
        A("v_max3_f32 %s, %s, %s, %s" % (v(M_), v(M_), v(SC_ + 6), v(SC_ + 7)))
        A("v_max_f32 %s, %s, %s" % (v(M_), v(M_), v(T)))
        xrow16("v_max_f32", [M_], [T])
        xrow32("v_max_f32", [M_], [T])
        A("s_mov_b32 %s, 0x%x" % (S_T, LOG2E))
        A("v_mul_f32 %s, %s, %s" % (v(T), S_T, v(M_)))
        for k in range(8):
            A("v_fma_f32 %s, %s, %s, -%s" % (v(SC_ + k), v(SC_ + k), S_T, v(T)))
        for k in range(8):
            A("v_exp_f32 %s, %s" % (v(SC_ + k), v(SC_ + k)))
        for k in range(4):
            A("v_cvt_pk_bf16_f32 %s, %s, %s" % (v(PF + k), v(SC_ + 2 * k), v(SC_ + 2 * k + 1)))
        for j in range(8):
            A("v_mfma_f32_16x16x32_bf16 %s, %s, %s, 0" % (v(ACC + 4 * j, 4), v(PF, 4), v(VF + 4 * j, 4)))
        A("v_add_f32 %s, %s, %s" % (v(L_), v(SC_), v(SC_ + 1)))
        A("v_add_f32 %s, %s, %s" % (v(T), v(SC_ + 2), v(SC_ + 3)))
        A("v_add_f32 %s, %s, %s" % (v(T + 1), v(SC_ + 4), v(SC_ + 5)))
        A("v_add_f32 %s, %s, %s" % (v(T + 2), v(SC_ + 6), v(SC_ + 7)))
        A("v_add_f32 %s, %s, %s" % (v(L_), v(L_), v(T)))
        A("v_add_f32 %s, %s, %s" % (v(T + 1), v(T + 1), v(T + 2)))
        A("v_add_f32 %s, %s, %s" % (v(L_), v(L_), v(T + 1)))
        xrow16("v_add_f32", [L_], [T])
        xrow32("v_add_f32", [L_], [T])
        A("s_mov_b64 exec, 0xf")
        A("ds_write_b32 %s, %s" % (v(V_LST), v(M_)))
        A("ds_write_b32 %s, %s offset:64" % (v(V_LST), v(L_)))
        A("s_mov_b64 exec, -1")
        for j in range(0, 8, 2):
            A("ds_write2_b32 %s, %s, %s offset0:%d offset1:%d" % (
                v(V_LO), v(ACC + 4 * j), v(ACC + 4 * (j + 1)), j, j + 1))
        A("s_waitcnt lgkmcnt(0)")
        A("s_barrier")
        A("ds_read_b128 %s, %s" % (v(T, 4), v(V_LRS)))
        A("ds_read_b128 %s, %s offset:64" % (v(T + 4, 4), v(V_LRS)))
        for w in range(4):
            A("ds_read_b64 %s, %s offset:%d" % (v(SC_ + 2 * w, 2), v(V_LRD), 2048 * w))
        A("s_waitcnt lgkmcnt(0)")
        A("v_max3_f32 %s, %s, %s, %s" % (v(M_), v(T), v(T + 1), v(T + 2)))
        A("v_max_f32 %s, %s, %s" % (v(M_), v(M_), v(T + 3)))
        A("s_mov_b32 %s, 0x%x" % (S_T, LOG2E))
        for w in range(4):
            A("v_sub_f32 %s, %s, %s" % (v(T + w), v(T + w), v(M_)))
        for w in range(4):
            A("v_mul_f32 %s, %s, %s" % (v(T + w), S_T, v(T + w)))
        for w in range(4):
            A("v_exp_f32 %s, %s" % (v(T + w), v(T + w)))
        O = T + 10
        A("v_mul_f32 %s, %s, %s" % (v(L_), v(T), v(T + 4)))
        A("v_mul_f32 %s, %s, %s" % (v(O), v(T), v(SC_)))
        A("v_mul_f32 %s, %s, %s" % (v(O + 2), v(T), v(SC_ + 1)))
        for w in range(1, 4):
            A("v_fmac_f32 %s, %s, %s" % (v(L_), v(T + w), v(T + 4 + w)))
            A("v_fmac_f32 %s, %s, %s" % (v(O), v(T + w), v(SC_ + 2 * w)))
            A("v_fmac_f32 %s, %s, %s" % (v(O + 2), v(T + w), v(SC_ + 2 * w + 1)))
        A("v_mov_b32 %s, %s" % (v(O + 1), S_NONCE))
        A("v_mov_b32 %s, %s" % (v(O + 3), S_NONCE))
        A("s_lshl_b32 %s, %s, 5" % (S_OFF, S_G))
        A("s_add_u32 %s, %s, %s" % (S_OFF, S_OFF, S_IDX))
        A("s_lshl_b32 %s, %s, 13" % (S_OFF, S_OFF))
        A("s_add_u32 %s, %s, 0x%x" % (S_OFF, S_OFF, LB(l) + AP))
        publish_local("buffer_store_dwordx4", v(O, 4), v(V_T16), S_OFF)
        A("v_mov_b32 v4, %s" % v(M_))
        A("v_mov_b32 v5, %s" % S_NONCE)
        A("v_mov_b32 v6, %s" % v(L_))
        A("v_mov_b32 v7, %s" % S_NONCE)
        A("s_lshl_b32 %s, %s, 4" % (S_T, S_W))
        A("s_add_u32 %s, %s, 4096" % (S_T, S_T))
        A("v_mov_b32 %s, %s" % (v(T), S_T))
        A("s_mov_b64 exec, 1")
        publish_local("buffer_store_dwordx4", "v[4:7]", v(T), S_OFF)
        A("s_mov_b64 exec, -1")
        A("s_lshl_b32 %s, %s, 18" % (S_L, S_G))
        A("s_add_u32 %s, %s, 0x%x" % (S_L, S_L, LB(l) + AP))
        CO, CS = 8, 12
        def loads2():
            A("buffer_load_dwordx4 %s, %s, %s, %s offen sc1" % (v(CO, 4), v(V_CO), WS, S_OFF))
            A("buffer_load_dwordx4 %s, %s, %s, %s offen sc1" % (v(CS, 4), v(V_CS), WS, S_OFF))
        poll(loads2, [CO + 1, CO + 3, CS + 1, CS + 3], 4, 5, True)
        A("v_mov_b32 %s, %s" % (v(M_), v(CS)))
        rowreduce("v_max_f32", [M_])
        xrow16("v_max_f32", [M_], [T])
        A("s_mov_b32 %s, 0x%x" % (S_T, LOG2E))
        A("v_sub_f32 %s, %s, %s" % (v(T), v(CS), v(M_)))
        A("v_mul_f32 %s, %s, %s" % (v(T), S_T, v(T)))
        A("v_exp_f32 %s, %s" % (v(T), v(T)))
        A("v_mul_f32 %s, %s, %s" % (v(T + 1), v(T), v(CO)))
        A("v_mul_f32 %s, %s, %s" % (v(T + 2), v(T), v(CO + 2)))
        A("v_mul_f32 %s, %s, %s" % (v(T + 3), v(T), v(CS + 2)))
        rowreduce("v_add_f32", [T + 1, T + 2, T + 3])
        xrow16("v_add_f32", [T + 1, T + 2, T + 3], [T + 4, T + 5, T + 6])
        A("v_rcp_f32 %s, %s" % (v(T + 3), v(T + 3)))
        A("v_mul_f32 %s, %s, %s" % (v(T + 1), v(T + 1), v(T + 3)))
        A("v_mul_f32 %s, %s, %s" % (v(T + 2), v(T + 2), v(T + 3)))
        A("v_cvt_pk_bf16_f32 v4, %s, %s" % (v(T + 1), v(T + 2)))
        A("v_mov_b32 v5, %s" % S_NONCE)
        A("s_lshl_b32 %s, %s, 11" % (S_OFF, S_G))
        A("s_add_u32 %s, %s, 0x%x" % (S_OFF, S_OFF, LB(l) + OS))
        A("s_mov_b32 exec_lo, 1")
        A("s_mov_b32 exec_hi, 1")
        publish_local("buffer_store_dwordx2", "v[4:5]", v(V_OS), S_OFF)
        A("s_mov_b64 exec, -1")
    A("s_branch L_end")


def role_wo():
    a.comment("================= WO role =================")
    a.label("L_wo")
    WF = 32
    OP = 64
    OF = 16
    ACC = 8
    V_W, V_O, V_XP, V_RED, V_LW, V_LR = 48, 49, 50, 51, 52, 53
    T = 96
    A("s_sub_u32 %s, s2, %d" % (S_IDX, B_WO))
    A("s_lshr_b32 %s, %s, 3" % (S_IDX, S_IDX))
    srd(SA, 12, 0x400000)
    A("v_lshlrev_b32 %s, 13, v2" % v(V_W))
    A("v_lshl_add_u32 %s, v3, 1, %s" % (v(V_W), v(V_W)))
    get_nonce(T)
    A("s_lshl_b32 %s, %s, 19" % (S_OFF, S_G))
    A("s_lshl_b32 %s, %s, 17" % (S_T, S_W))
    A("s_add_u32 %s, %s, %s" % (S_OFF, S_OFF, S_T))
    A("s_lshl_b32 %s, %s, 5" % (S_T, S_IDX))
    A("s_add_u32 %s, %s, %s" % (S_OFF, S_OFF, S_T))
    for j in range(4):
        A("s_add_u32 %s, %s, 0x%x" % (S_T, S_OFF, 32 * j * 1024))
        A("s_add_u32 %s, %s, 4096" % (S_T2, S_T))
        for i in range(8):
            A("buffer_load_ushort %s, %s, %s, %s offen offset:%d" % (
                v(OP + 8 * j + i), v(V_W), SA, S_T if i < 4 else S_T2, 1024 * (i & 3)))
    A("s_waitcnt vmcnt(0)")
    for j in range(4):
        for p in range(4):
            A("v_perm_b32 %s, %s, %s, %s" % (v(WF + 4 * j + p), v(OP + 8 * j + 2 * p + 1), v(OP + 8 * j + 2 * p), S_PLO))
    A("s_lshl_b32 %s, %s, 9" % (S_T, S_W))
    A("v_lshlrev_b32 %s, 5, v2" % v(V_O))
    A("v_add_u32 %s, %s, %s" % (v(V_O), S_T, v(V_O)))
    A("s_lshl_b32 %s, %s, 7" % (S_T, S_IDX))
    A("v_lshlrev_b32 %s, 3, v3" % v(V_XP))
    A("v_add_u32 %s, %s, %s" % (v(V_XP), S_T, v(V_XP)))
    A("s_lshl_b32 %s, %s, 9" % (S_T, S_IDX))
    A("v_lshlrev_b32 %s, 3, v1" % v(V_RED))
    A("v_add_u32 %s, %s, %s" % (v(V_RED), S_T, v(V_RED)))
    A("s_lshl_b32 %s, %s, 6" % (S_T, S_W))
    A("v_lshlrev_b32 %s, 2, v3" % v(V_LR))
    A("v_add_u32 %s, %s, %s" % (v(V_LW), S_T, v(V_LR)))
    for l in range(2):
        A("s_lshl_b32 %s, %s, 11" % (S_L, S_G))
        A("s_add_u32 %s, %s, 0x%x" % (S_L, S_L, LB(l) + OS))
        def loads():
            for j in range(4):
                for h in range(2):
                    A("buffer_load_dwordx4 %s, %s, %s, %s offen offset:%d sc1" % (
                        v(OP + 8 * j + 4 * h, 4), v(V_O), WS, S_OFF, 128 * j + 16 * h))
        poll(loads, [OP + 2 * k + 1 for k in range(16)], 4, 5, True)
        for k in range(16):
            A("v_mov_b32 %s, %s" % (v(OF + k), v(OP + 2 * k)))
        for j in range(4):
            A("v_mfma_f32_16x16x32_bf16 %s, %s, %s, %s" % (
                v(ACC + 4 * (j & 1), 4), v(OF + 4 * j, 4), v(WF + 4 * j, 4), "0" if j < 2 else v(ACC + 4 * (j & 1), 4)))
        A("v_add_f32 %s, %s, %s" % (v(T), v(ACC), v(ACC + 4)))
        A("ds_write_b32 %s, %s" % (v(V_LW), v(T)))
        A("s_waitcnt lgkmcnt(0)")
        A("s_barrier")
        lsk = a.newlabel("Lwo")
        lred = a.newlabel("Lred")
        A("s_cmp_lg_u32 %s, 0" % S_W)
        A("s_cbranch_scc1 %s" % lred)
        A("s_mov_b64 exec, 0xffff")
        for w in range(4):
            A("ds_read_b32 %s, %s offset:%d" % (v(T + w), v(V_LR), 64 * w))
        A("s_waitcnt lgkmcnt(0)")
        A("v_add_f32 %s, %s, %s" % (v(T), v(T), v(T + 1)))
        A("v_add_f32 %s, %s, %s" % (v(T + 2), v(T + 2), v(T + 3)))
        A("v_add_f32 %s, %s, %s" % (v(T), v(T), v(T + 2)))
        A("v_mov_b32 %s, %s" % (v(T + 1), S_NONCE))
        A("s_lshl_b32 %s, %s, 12" % (S_OFF, S_G))
        A("s_add_u32 %s, %s, 0x%x" % (S_OFF, S_OFF, LB(l) + XP))
        A("buffer_store_dwordx2 %s, %s, %s, %s offen sc1" % (v(T, 2), v(V_XP), WS, S_OFF))
        A("s_mov_b64 exec, -1")
        A("s_branch %s" % lsk)
        a.label(lred)
        A("s_cmp_lg_u32 %s, 1" % S_W)
        A("s_cbranch_scc1 %s" % lsk)
        A("s_cmp_ge_u32 %s, 8" % S_IDX)
        A("s_cbranch_scc1 %s" % lsk)
        A("s_lshl_b32 %s, %s, 15" % (S_L, S_G))
        A("s_add_u32 %s, %s, 0x%x" % (S_L, S_L, LB(l) + FP))
        RP = 64
        def loads3():
            for fi in range(7):
                A("s_add_u32 %s, %s, 0x%x" % (S_T2, S_OFF, fi * 0x1000))
                A("buffer_load_dwordx2 %s, %s, %s, %s offen sc1" % (v(RP + 2 * fi, 2), v(V_RED), WS, S_T2))
        poll(loads3, [RP + 2 * fi + 1 for fi in range(7)], 4, 5, True)
        A("v_add_f32 %s, %s, %s" % (v(T), v(RP), v(RP + 2)))
        for fi in range(2, 7):
            A("v_add_f32 %s, %s, %s" % (v(T), v(T), v(RP + 2 * fi)))
        A("v_mov_b32 %s, %s" % (v(T + 1), S_NONCE))
        A("s_lshl_b32 %s, %s, 12" % (S_OFF, S_G))
        A("s_add_u32 %s, %s, 0x%x" % (S_OFF, S_OFF, LB(l) + YP))
        A("buffer_store_dwordx2 %s, %s, %s, %s offen sc1" % (v(T, 2), v(V_RED), WS, S_OFF))
        a.label(lsk)
    A("s_branch L_end")


def role_ffn():
    a.comment("================= FFN role =================")
    a.label("L_ffn")
    S0 = 32
    R = [40, 48, 56, 64]
    W2IN = 96
    W2F = 64
    P = 96
    XO = 30
    YF = 96
    ACC1 = 112
    ACC2 = 96
    T = 16
    VX, VB1 = 14, 15
    V_T4, V_T8, V_T16, V_W, VLW, VLR, VST, VRED_W, VRED_R = 5, 6, 7, 8, 9, 10, 11, 12, 13
    V_HW, V_HR, V_FP = 128, 129, 130
    XA, XB_ = 26, 27
    S_F = "s69"

    def frag(j, c):
        base = S0 if j == 0 else R[j - 1]
        return base + 4 * c

    A("s_sub_u32 %s, s2, %d" % (S_IDX, B_FFN))
    A("s_lshr_b32 %s, %s, 3" % (S_IDX, S_IDX))
    A("s_mul_i32 %s, %s, 7" % (S_F, S_G))
    A("s_add_u32 %s, %s, %s" % (S_F, S_F, S_IDX))
    srd(SA, 16, 0x1C0000)
    srd(SB, 20, 0x1C0000)
    srd(SC, 4, 1024)
    srd(SD, 18, 3584)
    A("v_lshlrev_b32 %s, 2, v0" % v(V_T4))
    A("v_lshlrev_b32 %s, 3, v0" % v(V_T8))
    A("v_lshlrev_b32 %s, 4, v0" % v(V_T16))
    get_nonce(T)
    A("buffer_load_dword %s, %s, %s, 0 offen" % (v(VX), v(V_T4), SC))
    A("v_and_b32 v4, 31, v1")
    A("v_lshlrev_b32 v4, 1, v4")
    A("s_lshl_b32 %s, %s, 6" % (S_T, S_F))
    A("buffer_load_ushort %s, v4, %s, %s offen" % (v(VB1), SD, S_T))
    A("s_mov_b32 %s, %d" % (S_T, 8 * 3584))
    A("v_mul_lo_u32 %s, v2, %s" % (v(V_W), S_T))
    A("v_lshl_add_u32 %s, v3, 2, %s" % (v(V_W), v(V_W)))
    A("s_mul_i32 %s, %s, %d" % (S_OFF, S_W, 128 * 3584))
    A("s_lshl_b32 %s, %s, 6" % (S_T, S_F))
    A("s_add_u32 %s, %s, %s" % (S_OFF, S_OFF, S_T))
    for j in range(4):
        for i in range(8):
            A("s_add_u32 %s, %s, 0x%x" % (S_T, S_OFF, (32 * j + i) * 3584))
            A("buffer_load_dword %s, %s, %s, %s offen" % (v(R[j] + i), v(V_W), SA, S_T))
    A("v_lshlrev_b32 v4, 13, v2")
    A("v_lshl_add_u32 v4, v3, 4, v4")
    A("s_lshl_b32 %s, %s, 15" % (S_OFF, S_F))
    A("s_lshl_b32 %s, %s, 8" % (S_T, S_W))
    A("s_add_u32 %s, %s, %s" % (S_OFF, S_OFF, S_T))
    A("s_add_u32 %s, %s, 4096" % (S_T2, S_OFF))
    for i in range(8):
        A("buffer_load_dwordx4 %s, v4, %s, %s offen offset:%d" % (
            v(W2IN + 4 * i, 4), SB, S_OFF if i < 4 else S_T2, 1024 * (i & 3)))
    dense_lds_addrs(VLW, VLR, VST)
    A("s_lshl_b32 %s, %s, 7" % (S_T, S_W))
    A("s_add_u32 %s, %s, %d" % (S_T, S_T, L_RED))
    A("v_lshlrev_b32 %s, 3, v3" % v(VRED_W))
    A("v_add_u32 %s, %s, %s" % (v(VRED_W), S_T, v(VRED_W)))
    A("v_and_b32 v4, 31, v1")
    A("v_lshlrev_b32 %s, 2, v4" % v(VRED_R))
    A("v_add_u32 %s, %d, %s" % (v(VRED_R), L_RED, v(VRED_R)))
    A("s_lshl_b32 %s, %s, 6" % (S_T, S_W))
    A("s_add_u32 %s, %s, %d" % (S_T, S_T, L_H))
    A("v_lshlrev_b32 %s, 1, v4" % v(V_HW))
    A("v_add_u32 %s, %s, %s" % (v(V_HW), S_T, v(V_HW)))
    A("v_lshlrev_b32 %s, 4, v2" % v(V_HR))
    A("v_add_u32 %s, %s, %s" % (v(V_HR), S_T, v(V_HR)))
    A("s_lshl_b32 %s, %s, 10" % (S_T, S_W))
    A("v_lshlrev_b32 %s, 6, v3" % v(V_FP))
    A("v_add_u32 %s, %s, %s" % (v(V_FP), S_T, v(V_FP)))
    A("s_waitcnt vmcnt(0)")
    for j in range(4):
        for p in range(4):
            Ar, Br = R[j] + 2 * p, R[j] + 2 * p + 1
            A("v_perm_b32 %s, %s, %s, %s" % (v(frag(j, 0) + p), v(Br), v(Ar), S_PLO))
            A("v_perm_b32 %s, %s, %s, %s" % (v(frag(j, 1) + p), v(Br), v(Ar), S_PHI))
    for d in range(4):
        for p in range(4):
            Ar, Br = W2IN + 4 * (2 * p) + d, W2IN + 4 * (2 * p + 1) + d
            A("v_perm_b32 %s, %s, %s, %s" % (v(W2F + 4 * (2 * d) + p), v(Br), v(Ar), S_PLO))
            A("v_perm_b32 %s, %s, %s, %s" % (v(W2F + 4 * (2 * d + 1) + p), v(Br), v(Ar), S_PHI))
    A("v_lshlrev_b32 %s, 16, %s" % (v(VB1), v(VB1)))
    for l in range(2):
        poll_xpartials(LB(l) + XP, None if l == 0 else LB(1) + XB2, P, XO, V_T16, V_T8, T, T + 1)
        sum_partials(P, XA, XB_)
        rbf16_2(XA, XB_, T + 2)
        src = VX if l == 0 else XO
        A("v_lshlrev_b32 %s, 16, %s" % (v(T + 3), v(src)))
        A("v_and_b32 %s, 0xffff0000, %s" % (v(T + 4), v(src)))
        A("v_add_f32 %s, %s, %s" % (v(XA), v(XA), v(T + 3)))
        A("v_add_f32 %s, %s, %s" % (v(XB_), v(XB_), v(T + 4)))
        rbf16_2(XA, XB_, T + 2)
        lsk = a.newlabel("Lxb")
        A("s_cmp_lg_u32 %s, 0" % S_F)
        A("s_cbranch_scc1 %s" % lsk)
        A("v_mov_b32 %s, %s" % (v(XO), v(T + 2)))
        A("v_mov_b32 %s, %s" % (v(XO + 1), S_NONCE))
        A("s_mov_b32 %s, 0x%x" % (S_OFF, LB(l) + XB1))
        A("buffer_store_dwordx2 %s, %s, %s, %s offen sc1" % (v(XO, 2), v(V_T8), WS, S_OFF))
        a.label(lsk)
        layernorm(XA, XB_, YF, T, VLW, VLR, VST)
        for j in range(4):
            for c in range(2):
                A("v_mfma_f32_16x16x32_bf16 %s, %s, %s, %s" % (
                    v(ACC1 + 4 * c, 4), v(YF + 4 * j, 4), v(frag(j, c), 4), "0" if j == 0 else v(ACC1 + 4 * c, 4)))
        A("ds_write2_b32 %s, %s, %s offset0:0 offset1:1" % (v(VRED_W), v(ACC1), v(ACC1 + 4)))
        A("s_waitcnt lgkmcnt(0)")
        A("s_barrier")
        for w in range(4):
            A("ds_read_b32 %s, %s offset:%d" % (v(T + w), v(VRED_R), 128 * w))
        A("s_waitcnt lgkmcnt(0)")
        A("v_add_f32 %s, %s, %s" % (v(T), v(T), v(T + 1)))
        A("v_add_f32 %s, %s, %s" % (v(T + 2), v(T + 2), v(T + 3)))
        A("v_add_f32 %s, %s, %s" % (v(T), v(T), v(T + 2)))
        rbf16_1(T)
        A("v_add_f32 %s, %s, %s" % (v(T), v(T), v(VB1)))
        rbf16_1(T)
        A("v_mul_f32 %s, %s, %s" % (v(T + 1), v(T), v(T)))
        A("v_mul_f32 %s, 0x3d372713, %s" % (v(T + 1), v(T + 1)))
        A("v_fma_f32 %s, %s, %s, %s" % (v(T + 1), v(T + 1), v(T), v(T)))
        A("v_mul_f32 %s, 0xc0135761, %s" % (v(T + 1), v(T + 1)))
        A("v_exp_f32 %s, %s" % (v(T + 1), v(T + 1)))
        A("v_add_f32 %s, 1.0, %s" % (v(T + 1), v(T + 1)))
        A("v_rcp_f32 %s, %s" % (v(T + 1), v(T + 1)))
        A("v_mul_f32 %s, %s, %s" % (v(T), v(T), v(T + 1)))
        A("v_cvt_pk_bf16_f32 %s, %s, %s" % (v(T), v(T), v(T)))
        A("ds_write_b16 %s, %s" % (v(V_HW), v(T)))
        A("s_waitcnt lgkmcnt(0)")
        A("ds_read_b128 %s, %s" % (v(T + 4, 4), v(V_HR)))
        A("s_waitcnt lgkmcnt(0)")
        for j in range(8):
            A("v_mfma_f32_16x16x32_bf16 %s, %s, %s, 0" % (v(ACC2 + 4 * j, 4), v(T + 4, 4), v(W2F + 4 * j, 4)))
        A("s_lshl_b32 %s, %s, 3" % (S_OFF, S_G))
        A("s_add_u32 %s, %s, %s" % (S_OFF, S_OFF, S_IDX))
        A("s_lshl_b32 %s, %s, 12" % (S_OFF, S_OFF))
        A("s_add_u32 %s, %s, 0x%x" % (S_OFF, S_OFF, LB(l) + FP))
        A("s_add_u32 %s, %s, 0x%x" % (S_T2, S_OFF, GDELTA))
        A("s_mov_b64 exec, 0xffff")
        for q in range(4):
            b = ACC2 + 8 * q
            A("v_mov_b32 %s, %s" % (v(b + 2), v(b + 4)))
            A("v_mov_b32 %s, %s" % (v(b + 1), S_NONCE))
            A("v_mov_b32 %s, %s" % (v(b + 3), S_NONCE))
        for q in range(4):
            b = ACC2 + 8 * q
            A("buffer_store_dwordx4 %s, %s, %s, %s offen offset:%d" % (v(b, 4), v(V_FP), WS, S_OFF, 16 * q))
        for q in range(4):
            b = ACC2 + 8 * q
            A("buffer_store_dwordx4 %s, %s, %s, %s offen offset:%d sc1" % (v(b, 4), v(V_FP), WS, S_T2, 16 * q))
        A("s_mov_b64 exec, -1")
    A("s_branch L_end")


def main():
    hdr = open(OUT + ".ref").read().split("; Override launch geometry")[0]
    a.raw(hdr.rstrip("\n"))
    a.raw("; @launch grid=(%d,1,1) block=(256,1,1) lds=16384" % NWG)
    a.raw('.amdgcn_target "amdgcn-amd-amdhsa--gfx950"')
    a.raw(".text")
    a.raw(".globl %s_kernel" % NAME)
    a.raw(".p2align 8")
    a.raw(".type %s_kernel,@function" % NAME)
    a.raw("%s_kernel:" % NAME)
    prologue()
    role_wq()
    role_att()
    role_wo()
    role_ffn()
    a.label("L_end")
    a.raw("    s_endpgm")
    a.raw('.section .rodata,"a"')
    a.raw(".p2align 6")
    a.raw(".amdhsa_kernel %s_kernel" % NAME)
    a.raw("  .amdhsa_next_free_vgpr 140")
    a.raw("  .amdhsa_next_free_sgpr 80")
    a.raw("  .amdhsa_accum_offset 140")
    a.raw("  .amdhsa_group_segment_fixed_size 0")
    a.raw("  .amdhsa_kernarg_size 104")
    a.raw("  .amdhsa_user_sgpr_count 2")
    a.raw("  .amdhsa_user_sgpr_kernarg_segment_ptr 1")
    a.raw("  .amdhsa_system_sgpr_workgroup_id_x 1")
    a.raw(".end_amdhsa_kernel")
    open(OUT, "w").write(a.text())
    print("wrote", OUT, len(a.lines), "lines")


main()
```

```python
import sys, os
sys.path.insert(0, os.path.dirname(__file__))
from asmlib import Asm

NAME = "interleave_layers__sliding_block_cached__dense_activation_gelu__decode"
OUT = "cdna_kernels/%s.s" % NAME
REF = OUT + ".ref"
if len(sys.argv) > 1:
    OUT = sys.argv[1]

def env(k, d):
    return int(os.environ.get(k, str(d)))

N_WQ, N_ATT, N_WO, N_FFN = 64, 256, 256, 56
B_WQ = 0
B_ATT = B_WQ + N_WQ
B_WO = B_ATT + N_ATT
B_FFN = B_WO + N_WO
NWG = B_FFN + N_FFN

GDELTA = 0x4000000
LSTEP = 0x1000000
DUMMY = 2 * LSTEP
QS, OS, XP, YP, XB1, XB2, FP, AP = 0x0, 0x10000, 0x20000, 0x30000, 0x40000, 0x41000, 0x80000, 0x100000
GQ = 0x50000
LIMIT = 400000
NT = " nt" if env("NT", 1) else ""
DRY = env("DRY", 0)

LOG2E = 0x3fb8aa3b
SCALE = 0x3db504f3

a = Asm()
A = a

S_NONCE, S_G, S_IDX, S_W, S_CNT, S_T = "s30", "s31", "s32", "s33", "s34", "s35"
WS = "s[36:39]"
SA, SB, SC, SD = "s[40:43]", "s[44:47]", "s[48:51]", "s[64:67]"
DBG = "s[52:55]"
S_OFF, S_L, S_GOFF = "s56", "s57", "s58"
S_PLO, S_PHI = "s60", "s61"
S_T2 = "s59"
SM = "s[70:71]"
S_LB, S_LIM, S_ST = "s77", "s78", "s79"
S_C1, S_C2 = "s80", "s81"


def v(n, k=1):
    return "v%d" % n if k == 1 else "v[%d:%d]" % (n, n + k - 1)


def srd(dst, ptr, nbytes):
    d = int(dst[2:].split(":")[0])
    A("s_mov_b32 s%d, s%d" % (d, ptr))
    A("s_and_b32 s%d, s%d, 0xffff" % (d + 1, ptr + 1))
    A("s_mov_b32 s%d, 0x%x" % (d + 2, nbytes))
    A("s_mov_b32 s%d, 0x00020000" % (d + 3))


def tagcheck(tags, t1, t2):
    if len(tags) == 1:
        A("v_cmp_ne_u32 vcc, %s, %s" % (S_NONCE, v(tags[0])))
        return
    if len(tags) == 2:
        A("v_cmp_ne_u32 vcc, %s, %s" % (S_NONCE, v(tags[0])))
        A("v_cmp_ne_u32 %s, %s, %s" % (SM, S_NONCE, v(tags[1])))
        A("s_or_b64 vcc, vcc, %s" % SM)
        return
    A("v_min3_u32 %s, %s, %s, %s" % (v(t1), v(tags[0]), v(tags[1]), v(tags[2])))
    A("v_max3_u32 %s, %s, %s, %s" % (v(t2), v(tags[0]), v(tags[1]), v(tags[2])))
    rest = tags[3:]
    while rest:
        if len(rest) >= 2:
            A("v_min3_u32 %s, %s, %s, %s" % (v(t1), v(t1), v(rest[0]), v(rest[1])))
            A("v_max3_u32 %s, %s, %s, %s" % (v(t2), v(t2), v(rest[0]), v(rest[1])))
            rest = rest[2:]
        else:
            A("v_min_u32 %s, %s, %s" % (v(t1), v(t1), v(rest[0])))
            A("v_max_u32 %s, %s, %s" % (v(t2), v(t2), v(rest[0])))
            rest = rest[1:]
    A("v_cmp_ne_u32 vcc, %s, %s" % (S_NONCE, v(t1)))
    A("v_cmp_ne_u32 %s, %s, %s" % (SM, S_NONCE, v(t2)))
    A("s_or_b64 vcc, vcc, %s" % SM)


def poll(emit_loads, tags, t1, t2, local, hook=None):
    lp = a.newlabel("Lp")
    ld = a.newlabel("Ld")
    A("s_mov_b32 %s, 0" % S_CNT)
    if local:
        A("s_add_u32 %s, %s, 0x%x" % (S_GOFF, S_L, GDELTA))
    a.label(lp)
    if local:
        A("s_and_b32 %s, %s, 15" % (S_T, S_CNT))
        A("s_cmp_eq_u32 %s, 15" % S_T)
        A("s_cselect_b32 %s, %s, %s" % (S_OFF, S_GOFF, S_L))
        if hook is not None:
            lh = a.newlabel("Lh")
            A("s_cbranch_scc0 %s" % lh)
            hook()
            a.label(lh)
    emit_loads()
    A("s_waitcnt vmcnt(0)")
    tagcheck(tags, t1, t2)
    A("s_cbranch_vccz %s" % ld)
    A("s_add_u32 %s, %s, 1" % (S_CNT, S_CNT))
    A("s_cmp_lt_u32 %s, %s" % (S_CNT, S_LIM))
    A("s_cbranch_scc1 %s" % lp)
    a.label(ld)


def get_nonce(t):
    lp = a.newlabel("Ln")
    ld = a.newlabel("Lnd")
    A("s_mov_b32 %s, 0" % S_CNT)
    a.label(lp)
    A("buffer_load_dword %s, off, %s, 0 sc1" % (v(t), DBG))
    A("s_waitcnt vmcnt(0)")
    A("v_readfirstlane_b32 %s, %s" % (S_NONCE, v(t)))
    A("s_cmp_lg_u32 %s, 0" % S_NONCE)
    A("s_cbranch_scc1 %s" % ld)
    A("s_sleep 2")
    A("s_add_u32 %s, %s, 1" % (S_CNT, S_CNT))
    A("s_cmp_lt_u32 %s, %d" % (S_CNT, LIMIT))
    A("s_cbranch_scc1 %s" % lp)
    a.label(ld)


L_NONCE = 12288
def get_nonce_shared(t):
    lsk = a.newlabel("Lns")
    A("v_mov_b32 %s, %d" % (v(t + 2), L_NONCE))
    A("s_cmp_lg_u32 %s, 0" % S_W)
    A("s_cbranch_scc1 %s" % lsk)
    get_nonce(t)
    A("v_mov_b32 %s, %s" % (v(t), S_NONCE))
    A("ds_write_b32 %s, %s" % (v(t + 2), v(t)))
    A("s_waitcnt lgkmcnt(0)")
    a.label(lsk)
    A("s_barrier")
    A("ds_read_b32 %s, %s" % (v(t), v(t + 2)))
    A("s_waitcnt lgkmcnt(0)")
    A("v_readfirstlane_b32 %s, %s" % (S_NONCE, v(t)))


def gate(t):
    lsk = a.newlabel("Lgs")
    lp = a.newlabel("Lgp")
    A("s_cmp_lg_u32 %s, 0" % S_W)
    A("s_cbranch_scc1 %s" % lsk)
    A("s_mov_b32 %s, 0" % S_CNT)
    A("s_add_u32 %s, %s, 0x%x" % (S_GOFF, S_L, GDELTA))
    a.label(lp)
    A("s_and_b32 %s, %s, 15" % (S_T, S_CNT))
    A("s_cmp_eq_u32 %s, 15" % S_T)
    A("s_cselect_b32 %s, %s, %s" % (S_OFF, S_GOFF, S_L))
    A("buffer_load_dword %s, off, %s, %s offset:4 sc1" % (v(t), WS, S_OFF))
    A("s_waitcnt vmcnt(0)")
    A("v_readfirstlane_b32 %s, %s" % (S_T, v(t)))
    A("s_cmp_eq_u32 %s, %s" % (S_T, S_NONCE))
    A("s_cbranch_scc1 %s" % lsk)
    A("s_sleep 1")
    A("s_add_u32 %s, %s, 1" % (S_CNT, S_CNT))
    A("s_cmp_lt_u32 %s, %s" % (S_CNT, S_LIM))
    A("s_cbranch_scc1 %s" % lp)
    a.label(lsk)
    A("s_barrier")


def slab(dst, shift, const, extra=None):
    A("s_lshl_b32 %s, %s, %d" % (dst, S_G, shift))
    A("s_add_u32 %s, %s, %s" % (dst, dst, S_LB))
    if extra:
        A("s_add_u32 %s, %s, %s" % (dst, dst, extra))
    if const:
        A("s_add_u32 %s, %s, 0x%x" % (dst, dst, const))


def rowreduce(op, regs):
    for sh in (8, 4, 2, 1):
        for r in regs:
            A("%s_dpp %s, %s, %s row_ror:%d row_mask:0xf bank_mask:0xf" % (op, v(r), v(r), v(r), sh))


def xrow16(op, regs, tmps):
    for r, t in zip(regs, tmps):
        A("v_mov_b32 %s, %s" % (v(t), v(r)))
    for r, t in zip(regs, tmps):
        A("v_permlane16_swap_b32 %s, %s" % (v(r), v(t)))
    for r, t in zip(regs, tmps):
        A("%s %s, %s, %s" % (op, v(r), v(r), v(t)))


def xrow32(op, regs, tmps):
    for r, t in zip(regs, tmps):
        A("v_mov_b32 %s, %s" % (v(t), v(r)))
    for r, t in zip(regs, tmps):
        A("v_permlane32_swap_b32 %s, %s" % (v(r), v(t)))
    for r, t in zip(regs, tmps):
        A("%s %s, %s, %s" % (op, v(r), v(r), v(t)))


def rbf16_2(ra, rb, t):
    A("v_cvt_pk_bf16_f32 %s, %s, %s" % (v(t), v(ra), v(rb)))
    A("v_lshlrev_b32 %s, 16, %s" % (v(ra), v(t)))
    A("v_and_b32 %s, 0xffff0000, %s" % (v(rb), v(t)))


def rbf16_1(ra):
    A("v_cvt_pk_bf16_f32 %s, %s, %s" % (v(ra), v(ra), v(ra)))
    A("v_lshlrev_b32 %s, 16, %s" % (v(ra), v(ra)))


def publish_local(instr, data, voff, base):
    A("%s %s, %s, %s, %s offen" % (instr, data, voff, WS, base))
    A("s_add_u32 %s, %s, 0x%x" % (S_T2, base, GDELTA))
    A("%s %s, %s, %s, %s offen sc1" % (instr, data, voff, WS, S_T2))


STAMP = env("STAMP", 0)
STAMP_BASE = 0x10000000
STAMPW = [0]
def stamp(i, per_layer=0):
    if not STAMP:
        return
    lsk = a.newlabel("Lst")
    A("s_cmp_lg_u32 %s, %d" % (S_W, STAMPW[0]))
    A("s_cbranch_scc1 %s" % lsk)
    A("s_cmp_eq_u32 %s, 0" % S_LIM)
    A("s_cbranch_scc1 %s" % lsk)
    A("s_memrealtime s[72:73]")
    A("s_lshl_b32 s74, s2, 7")
    A("s_add_u32 s74, s74, 0x%x" % (STAMP_BASE + 4 * i))
    if per_layer:
        A("s_lshr_b32 s82, %s, 24" % S_LB)
        A("s_mul_i32 s82, s82, %d" % (4 * per_layer))
        A("s_add_u32 s74, s74, s82")
    A("s_waitcnt lgkmcnt(0)")
    A("v_mov_b32 v4, s72")
    A("buffer_store_dword v4, off, %s, s74" % WS)
    a.label(lsk)


L_STATS, L_Y, L_RED, L_H = 0, 64, 2048, 3328


def layernorm(xa, xb, yf, T, vlds_y_w, vlds_y_r, vlds_st):
    s1, s2 = T, T + 1
    A("v_add_f32 %s, %s, %s" % (v(s1), v(xa), v(xb)))
    A("v_mul_f32 %s, %s, %s" % (v(s2), v(xa), v(xa)))
    A("v_fmac_f32 %s, %s, %s" % (v(s2), v(xb), v(xb)))
    rowreduce("v_add_f32", [s1, s2])
    xrow16("v_add_f32", [s1, s2], [T + 2, T + 3])
    xrow32("v_add_f32", [s1, s2], [T + 2, T + 3])
    A("ds_write_b64 %s, %s" % (v(vlds_st), v(s1, 2)))
    A("v_mov_b32 %s, 0" % v(T + 9))
    A("s_waitcnt lgkmcnt(0)")
    A("s_barrier")
    A("ds_read_b128 %s, %s offset:%d" % (v(T, 4), v(T + 9), L_STATS))
    A("ds_read_b128 %s, %s offset:%d" % (v(T + 4, 4), v(T + 9), L_STATS + 16))
    A("s_waitcnt lgkmcnt(0)")
    A("v_add_f32 %s, %s, %s" % (v(T), v(T), v(T + 2)))
    A("v_add_f32 %s, %s, %s" % (v(T + 1), v(T + 1), v(T + 3)))
    A("v_add_f32 %s, %s, %s" % (v(T + 4), v(T + 4), v(T + 6)))
    A("v_add_f32 %s, %s, %s" % (v(T + 5), v(T + 5), v(T + 7)))
    A("v_add_f32 %s, %s, %s" % (v(T), v(T), v(T + 4)))
    A("v_add_f32 %s, %s, %s" % (v(T + 1), v(T + 1), v(T + 5)))
    A("v_mul_f32 %s, 0x3b000000, %s" % (v(T), v(T)))
    A("v_mul_f32 %s, 0x3b000000, %s" % (v(T + 1), v(T + 1)))
    A("v_fma_f32 %s, -%s, %s, %s" % (v(T + 1), v(T), v(T), v(T + 1)))
    A("v_max_f32 %s, 0, %s" % (v(T + 1), v(T + 1)))
    rbf16_2(T, T + 1, T + 2)
    A("v_add_f32 %s, 0x3727c5ac, %s" % (v(T + 1), v(T + 1)))
    A("v_sub_f32 %s, %s, %s" % (v(T + 4), v(xa), v(T)))
    A("v_sub_f32 %s, %s, %s" % (v(T + 5), v(xb), v(T)))
    rbf16_1(T + 1)
    A("v_sqrt_f32 %s, %s" % (v(T + 1), v(T + 1)))
    rbf16_2(T + 4, T + 5, T + 2)
    rbf16_1(T + 1)
    A("v_rcp_f32 %s, %s" % (v(T + 1), v(T + 1)))
    A("v_mul_f32 %s, %s, %s" % (v(T + 4), v(T + 4), v(T + 1)))
    A("v_mul_f32 %s, %s, %s" % (v(T + 5), v(T + 5), v(T + 1)))
    A("v_cvt_pk_bf16_f32 %s, %s, %s" % (v(T + 2), v(T + 4), v(T + 5)))
    A("ds_write_b32 %s, %s" % (v(vlds_y_w), v(T + 2)))
    A("s_waitcnt lgkmcnt(0)")
    for j in range(4):
        A("ds_read_b128 %s, %s offset:%d" % (v(yf + 4 * j, 4), v(vlds_y_r), 64 * j))
    A("s_waitcnt lgkmcnt(0)")


def dense_lds_addrs(vw, vr, vst):
    A("s_lshl_b32 %s, %s, 8" % (S_T, S_W))
    A("s_add_u32 %s, %s, %d" % (S_T, S_T, L_Y))
    A("v_lshlrev_b32 %s, 2, v1" % v(vw))
    A("v_add_u32 %s, %s, %s" % (v(vw), S_T, v(vw)))
    A("v_lshlrev_b32 %s, 4, v2" % v(vr))
    A("v_add_u32 %s, %s, %s" % (v(vr), S_T, v(vr)))
    A("s_lshl_b32 %s, %s, 3" % (S_T, S_W))
    A("v_mov_b32 %s, %s" % (v(vst), S_T))


def poll_xpartials(slab_off, xold_off, P, XO, vt16, vt8, t1, t2):
    def loads():
        for g in range(8):
            A("s_add_u32 %s, %s, 0x%x" % (S_OFF, S_LB, slab_off + g * 0x1000))
            A("buffer_load_dwordx4 %s, %s, %s, %s offen sc1" % (v(P + 4 * g, 4), v(vt16), WS, S_OFF))
        A("s_add_u32 %s, %s, 0x%x" % (S_OFF, S_LB, xold_off))
        A("buffer_load_dwordx2 %s, %s, %s, %s offen sc1" % (v(XO, 2), v(vt8), WS, S_OFF))
    tags = []
    for g in range(8):
        tags += [P + 4 * g + 1, P + 4 * g + 3]
    tags.append(XO + 1)
    poll(loads, tags, t1, t2, False)


def sum_partials(P, ra, rb):
    A("v_add_f32 %s, %s, %s" % (v(ra), v(P), v(P + 4)))
    A("v_add_f32 %s, %s, %s" % (v(rb), v(P + 2), v(P + 6)))
    for g in range(2, 8):
        A("v_add_f32 %s, %s, %s" % (v(ra), v(ra), v(P + 4 * g)))
        A("v_add_f32 %s, %s, %s" % (v(rb), v(rb), v(P + 4 * g + 2)))


def set_dry():
    A("s_mov_b32 %s, 0x%x" % (S_LB, DUMMY))
    A("s_mov_b32 %s, 0" % S_LIM)


def set_real(lb):
    A("s_mov_b32 %s, 0x%x" % (S_LB, lb))
    A("s_mov_b32 %s, %d" % (S_LIM, LIMIT))


def loop_tail(ltop):
    l1 = a.newlabel("Lt")
    A("s_cmp_lg_u32 %s, 0" % S_LIM)
    A("s_cbranch_scc1 %s" % l1)
    set_real(0)
    A("s_branch %s" % ltop)
    a.label(l1)
    A("s_cmp_lg_u32 %s, 0" % S_LB)
    A("s_cbranch_scc1 L_end")
    A("s_mov_b32 %s, 0x%x" % (S_LB, LSTEP))
    A("s_branch %s" % ltop)


def prologue():
    A("s_cmp_ge_u32 s2, %d" % NWG)
    A("s_cbranch_scc1 L_end")
    A("s_load_dwordx16 s[4:19], s[0:1], 0")
    A("s_load_dwordx8 s[20:27], s[0:1], 64")
    A("s_load_dwordx2 s[28:29], s[0:1], 96")
    A("v_and_b32 v1, 63, v0")
    A("v_lshrrev_b32 v2, 4, v1")
    A("v_and_b32 v3, 15, v0")
    A("v_lshrrev_b32 v4, 6, v0")
    A("v_readfirstlane_b32 %s, v4" % S_W)
    A("s_and_b32 %s, s2, 7" % S_G)
    A("s_mov_b32 %s, 0x05040100" % S_PLO)
    A("s_mov_b32 %s, 0x07060302" % S_PHI)
    A("s_mov_b32 %s, 0x%x" % (S_C1, LOG2E))
    A("s_mov_b32 %s, 0x%x" % (S_C2, SCALE))
    A("s_mov_b32 %s, 0" % S_NONCE)
    set_real(0)
    A("s_waitcnt lgkmcnt(0)")
    srd(WS, 28, 0x20000000)
    srd(DBG, 26, 256)
    A("s_cmp_ge_u32 s2, %d" % B_FFN)
    A("s_cbranch_scc1 L_ffn")
    A("s_cmp_ge_u32 s2, %d" % B_WO)
    A("s_cbranch_scc1 L_wo")
    A("s_cmp_ge_u32 s2, %d" % B_ATT)
    A("s_cbranch_scc1 L_att")


def role_wq():
    a.comment("================= WQ role =================")
    S0 = 32
    R = [48, 64, 80, 128]
    P = 96
    XO = 30
    YF = 96
    ACC = 112
    T = 16
    VX, VB2 = 14, 15
    V_T4, V_T8, V_T16, V_W, VLW, VLR, VST, VRED_W, VRED_R = 5, 6, 7, 8, 9, 10, 11, 12, 13
    XA, XB_, B2A, B2B = 26, 27, 28, 29

    def frag(j, c):
        base = S0 if j == 0 else R[j - 1]
        return base + 4 * c

    lskip = a.newlabel("Lnn")
    A("s_or_b32 %s, s2, %s" % (S_T, S_W))
    A("s_cmp_lg_u32 %s, 0" % S_T)
    A("s_cbranch_scc1 %s" % lskip)
    A("s_memrealtime s[62:63]")
    A("s_waitcnt lgkmcnt(0)")
    A("s_or_b32 s62, s62, 1")
    A("v_mov_b32 v5, s62")
    A("buffer_store_dword v5, off, %s, 0 sc1" % DBG)
    a.label(lskip)

    stamp(0)
    A("s_lshr_b32 %s, s2, 3" % S_IDX)
    srd(SA, 10, 0x400000)
    srd(SB, 4, 1024)
    srd(SC, 22, 1024)
    srd(SD, 24, 1024)
    A("v_lshlrev_b32 %s, 2, v0" % v(V_T4))
    A("v_lshlrev_b32 %s, 3, v0" % v(V_T8))
    A("v_lshlrev_b32 %s, 4, v0" % v(V_T16))
    A("buffer_load_dword %s, %s, %s, 0 offen" % (v(VX), v(V_T4), SB))
    A("buffer_load_dword %s, %s, %s, 0 offen" % (v(VB2), v(V_T4), SC))
    A("v_lshlrev_b32 %s, 16, v2" % v(V_W))
    A("v_lshl_add_u32 %s, v3, 3, %s" % (v(V_W), v(V_W)))
    A("s_lshl_b32 %s, %s, 20" % (S_OFF, S_W))
    A("s_lshl_b32 %s, %s, 10" % (S_T, S_G))
    A("s_add_u32 %s, %s, %s" % (S_OFF, S_OFF, S_T))
    A("s_lshl_b32 %s, %s, 7" % (S_T, S_IDX))
    A("s_add_u32 %s, %s, %s" % (S_OFF, S_OFF, S_T))
    for j in range(4):
        for i in range(8):
            A("s_add_u32 %s, %s, 0x%x" % (S_T, S_OFF, (32 * j + i) * 8192))
            A("buffer_load_dwordx2 %s, %s, %s, %s offen%s" % (v(R[j] + 2 * i, 2), v(V_W), SA, S_T, NT))
    dense_lds_addrs(VLW, VLR, VST)
    A("s_lshl_b32 %s, %s, 8" % (S_T, S_W))
    A("s_add_u32 %s, %s, %d" % (S_T, S_T, L_RED))
    A("v_lshlrev_b32 %s, 4, v3" % v(VRED_W))
    A("v_add_u32 %s, %s, %s" % (v(VRED_W), S_T, v(VRED_W)))
    A("v_add_u32 %s, %d, %s" % (v(VRED_R), L_RED, v(V_T8)))
    A("s_lshl_b32 s69, %s, 8" % S_IDX)
    if DRY:
        A("s_mov_b32 %s, 0" % S_ST)
        set_dry()
        A("v_mov_b32 %s, 0" % v(XA))
        A("v_mov_b32 %s, 0" % v(XB_))
        A("s_branch L_wqA")
    a.label("L_wq_init")
    set_real(0)
    A("s_mov_b32 %s, 1" % S_ST)
    get_nonce_shared(T)
    A("s_waitcnt vmcnt(0)")
    stamp(1)
    for j in range(4):
        for p in range(4):
            A0, A1, B0, B1 = R[j] + 4 * p, R[j] + 4 * p + 1, R[j] + 4 * p + 2, R[j] + 4 * p + 3
            A("v_perm_b32 %s, %s, %s, %s" % (v(frag(j, 0) + p), v(B0), v(A0), S_PLO))
            A("v_perm_b32 %s, %s, %s, %s" % (v(frag(j, 1) + p), v(B0), v(A0), S_PHI))
            A("v_perm_b32 %s, %s, %s, %s" % (v(frag(j, 2) + p), v(B1), v(A1), S_PLO))
            A("v_perm_b32 %s, %s, %s, %s" % (v(frag(j, 3) + p), v(B1), v(A1), S_PHI))
    A("v_lshlrev_b32 %s, 16, %s" % (v(B2A), v(VB2)))
    A("v_and_b32 %s, 0xffff0000, %s" % (v(B2B), v(VB2)))
    A("v_lshlrev_b32 %s, 16, %s" % (v(XA), v(VX)))
    A("v_and_b32 %s, 0xffff0000, %s" % (v(XB_), v(VX)))
    A("v_mov_b32 %s, %s" % (v(T + 2), v(VX)))

    a.label("L_wqA")
    lsk = a.newlabel("Lan")
    A("s_or_b32 %s, %s, %s" % (S_T, S_IDX, S_W))
    A("s_cmp_lg_u32 %s, 0" % S_T)
    A("s_cbranch_scc1 %s" % lsk)
    A("v_mov_b32 %s, %s" % (v(T + 8), S_NONCE))
    A("v_mov_b32 %s, %s" % (v(T + 9), S_NONCE))
    slab(S_OFF, 7, GQ)
    A("s_mov_b64 exec, 1")
    publish_local("buffer_store_dwordx2", v(T + 8, 2), v(V_T8), S_OFF)
    A("s_mov_b64 exec, -1")
    a.label(lsk)
    lsk = a.newlabel("Lxb")
    A("s_cmp_lg_u32 s2, 0")
    A("s_cbranch_scc1 %s" % lsk)
    A("v_mov_b32 %s, %s" % (v(XO), v(T + 2)))
    A("v_mov_b32 %s, %s" % (v(XO + 1), S_NONCE))
    A("s_add_u32 %s, %s, 0x%x" % (S_OFF, S_LB, XB2))
    A("buffer_store_dwordx2 %s, %s, %s, %s offen sc1" % (v(XO, 2), v(V_T8), WS, S_OFF))
    a.label(lsk)
    layernorm(XA, XB_, YF, T, VLW, VLR, VST)
    for j in range(4):
        for c in range(4):
            A("v_mfma_f32_16x16x32_bf16 %s, %s, %s, %s" % (
                v(ACC + 4 * c, 4), v(YF + 4 * j, 4), v(frag(j, c), 4), "0" if j == 0 else v(ACC + 4 * c, 4)))
    for c in range(4):
        A("ds_write_b32 %s, %s offset:%d" % (v(VRED_W), v(ACC + 4 * c), 4 * c))
    slab(S_OFF, 11, QS, "s69")
    A("s_waitcnt lgkmcnt(0)")
    A("s_barrier")
    lsk = a.newlabel("Lq")
    A("s_cmp_lg_u32 %s, 0" % S_W)
    A("s_cbranch_scc1 %s" % lsk)
    A("s_mov_b32 exec_hi, 0")
    for w in range(4):
        A("ds_read_b64 %s, %s offset:%d" % (v(T + 2 * w, 2), v(VRED_R), 256 * w))
    A("s_waitcnt lgkmcnt(0)")
    A("v_add_f32 %s, %s, %s" % (v(T), v(T), v(T + 2)))
    A("v_add_f32 %s, %s, %s" % (v(T + 1), v(T + 1), v(T + 3)))
    A("v_add_f32 %s, %s, %s" % (v(T + 4), v(T + 4), v(T + 6)))
    A("v_add_f32 %s, %s, %s" % (v(T + 5), v(T + 5), v(T + 7)))
    A("v_add_f32 %s, %s, %s" % (v(T), v(T), v(T + 4)))
    A("v_add_f32 %s, %s, %s" % (v(T + 1), v(T + 1), v(T + 5)))
    A("v_cvt_pk_bf16_f32 %s, %s, %s" % (v(T), v(T), v(T + 1)))
    A("v_mov_b32 %s, %s" % (v(T + 1), S_NONCE))
    publish_local("buffer_store_dwordx2", v(T, 2), v(V_T8), S_OFF)
    A("s_mov_b64 exec, -1")
    a.label(lsk)
    stamp(2, 2)
    A("s_cmp_eq_u32 %s, 0" % S_ST)
    A("s_cbranch_scc1 L_wq_init")
    l4 = a.newlabel("Lst4")
    A("s_cmp_eq_u32 %s, 4" % S_ST)
    A("s_cbranch_scc1 %s" % l4)
    if DRY:
        A("s_mov_b32 %s, 2" % S_ST)
        set_dry()
    else:
        A("s_mov_b32 %s, 3" % S_ST)
    A("s_branch L_wqB")
    a.label(l4)
    A("s_cmp_lg_u32 s2, 0")
    A("s_cbranch_scc1 L_end")
    A("s_mov_b32 %s, 5" % S_ST)

    a.label("L_wqB")
    slab(S_L, 15, FP)
    gate(T)
    poll_xpartials(YP, XB1, P, XO, V_T16, V_T8, T, T + 1)
    sum_partials(P, XA, XB_)
    rbf16_2(XA, XB_, T + 2)
    A("v_add_f32 %s, %s, %s" % (v(XA), v(XA), v(B2A)))
    A("v_add_f32 %s, %s, %s" % (v(XB_), v(XB_), v(B2B)))
    rbf16_2(XA, XB_, T + 2)
    A("v_lshlrev_b32 %s, 16, %s" % (v(T + 3), v(XO)))
    A("v_and_b32 %s, 0xffff0000, %s" % (v(T + 4), v(XO)))
    A("v_add_f32 %s, %s, %s" % (v(XA), v(XA), v(T + 3)))
    A("v_add_f32 %s, %s, %s" % (v(XB_), v(XB_), v(T + 4)))
    rbf16_2(XA, XB_, T + 2)
    stamp(3, 2)
    l3 = a.newlabel("Lst3")
    l5 = a.newlabel("Lst5")
    A("s_cmp_eq_u32 %s, 3" % S_ST)
    A("s_cbranch_scc1 %s" % l3)
    A("s_cmp_eq_u32 %s, 5" % S_ST)
    A("s_cbranch_scc1 %s" % l5)
    A("s_mov_b32 %s, 3" % S_ST)
    set_real(0)
    A("s_branch L_wqB")
    a.label(l3)
    A("s_mov_b32 %s, 4" % S_ST)
    A("s_mov_b32 %s, 0x%x" % (S_LB, LSTEP))
    A("s_branch L_wqA")
    a.label(l5)
    A("buffer_store_dword %s, %s, %s, 0 offen" % (v(T + 2), v(V_T4), SD))
    A("s_branch L_end")


def role_att():
    a.comment("================= ATT role =================")
    a.label("L_att")
    KF = 32
    VF = 64
    VIN = 96
    QP = 96
    QF = 16
    SC_ = 8
    PF = 4
    ACC = 96
    V_K, V_V, V_Q, V_T16, V_CO, V_CS, V_OS, V_LO, V_LST, V_LRD, V_LRS = (
        128, 129, 130, 131, 132, 133, 134, 135, 136, 137, 138)
    V_QW, V_QR, V_PS, V_CM = 139, 140, 142, 143
    T = 16
    L_ST = 8192
    L_Q = 12544

    stamp(0)
    A("s_sub_u32 %s, s2, %d" % (S_IDX, B_ATT))
    A("s_lshr_b32 %s, %s, 3" % (S_IDX, S_IDX))
    srd(SA, 6, 0x8000000)
    srd(SB, 8, 0x8000000)
    A("v_lshlrev_b32 %s, 8, v3" % v(V_K))
    A("v_lshl_add_u32 %s, v2, 4, %s" % (v(V_K), v(V_K)))
    A("v_lshlrev_b32 %s, 10, v2" % v(V_V))
    A("v_lshl_add_u32 %s, v3, 4, %s" % (v(V_V), v(V_V)))
    A("s_lshl_b32 %s, %s, 24" % (S_OFF, S_G))
    A("s_lshl_b32 %s, %s, 15" % (S_T, S_IDX))
    A("s_add_u32 %s, %s, %s" % (S_OFF, S_OFF, S_T))
    A("s_lshl_b32 %s, %s, 13" % (S_T, S_W))
    A("s_add_u32 %s, %s, %s" % (S_OFF, S_OFF, S_T))
    A("s_add_u32 %s, %s, 0x%x" % (S_OFF, S_OFF, 61440 * 256))
    A("s_add_u32 %s, %s, 4096" % (S_T2, S_OFF))
    for Tt in range(2):
        for j in range(4):
            A("buffer_load_dwordx4 %s, %s, %s, %s offen offset:%d%s" % (
                v(KF + 16 * Tt + 4 * j, 4), v(V_K), SA, S_OFF if Tt == 0 else S_T2, 64 * j, NT))
    for i in range(8):
        A("buffer_load_dwordx4 %s, %s, %s, %s offen offset:%d%s" % (
            v(VIN + 4 * i, 4), v(V_V), SB, S_OFF if i < 4 else S_T2, 256 * (i & 3), NT))
    A("v_lshrrev_b32 v4, 2, v3")
    A("v_add_u32 v4, v4, v3")
    A("v_and_b32 v4, 3, v4")
    A("v_lshlrev_b32 %s, 4, v1" % v(V_Q))
    A("s_lshl_b32 %s, %s, 10" % (S_T, S_W))
    A("s_add_u32 %s, %s, %d" % (S_T, S_T, L_Q))
    A("v_lshlrev_b32 %s, 3, v1" % v(V_QW))
    A("v_add_u32 %s, %s, %s" % (v(V_QW), S_T, v(V_QW)))
    A("v_lshlrev_b32 %s, 8, v4" % v(V_QR))
    A("v_lshl_add_u32 %s, v2, 4, %s" % (v(V_QR), v(V_QR)))
    A("v_add_u32 %s, %s, %s" % (v(V_QR), S_T, v(V_QR)))
    A("v_lshrrev_b32 v4, 3, v0")
    A("v_lshlrev_b32 v4, 13, v4")
    A("v_and_b32 v5, 7, v0")
    A("v_lshl_add_u32 %s, v5, 4, v4" % v(V_T16))
    A("s_lshl_b32 %s, %s, 7" % (S_T, S_IDX))
    A("v_add_u32 %s, %s, %s" % (v(V_T16), S_T, v(V_T16)))
    A("s_lshl_b32 %s, %s, 4" % (S_T, S_IDX))
    A("s_add_u32 %s, %s, 4096" % (S_T, S_T))
    A("v_add_u32 %s, %s, v4" % (v(V_PS), S_T))
    A("v_lshlrev_b32 %s, 4, v1" % v(V_CO))
    A("v_and_b32 v4, 31, v1")
    A("v_lshlrev_b32 v4, 4, v4")
    A("v_add_u32 %s, 4096, v4" % v(V_CS))
    A("v_lshrrev_b32 v4, 3, v1")
    A("v_lshlrev_b32 v4, 4, v4")
    A("v_add_u32 %s, 4096, v4" % v(V_CM))
    A("s_lshl_b32 %s, %s, 6" % (S_T, S_IDX))
    A("v_lshlrev_b32 %s, 3, v1" % v(V_OS))
    A("v_add_u32 %s, %s, %s" % (v(V_OS), S_T, v(V_OS)))
    A("s_lshl_b32 %s, %s, 11" % (S_T, S_W))
    A("v_lshlrev_b32 %s, 9, v2" % v(V_LO))
    A("v_lshl_add_u32 %s, v3, 5, %s" % (v(V_LO), v(V_LO)))
    A("v_add_u32 %s, %s, %s" % (v(V_LO), S_T, v(V_LO)))
    A("s_lshl_b32 %s, %s, 2" % (S_T, S_W))
    A("s_add_u32 %s, %s, %d" % (S_T, S_T, L_ST))
    A("v_and_b32 v4, 3, v3")
    A("v_lshlrev_b32 %s, 4, v4" % v(V_LST))
    A("v_add_u32 %s, %s, %s" % (v(V_LST), S_T, v(V_LST)))
    A("v_lshlrev_b32 %s, 3, v0" % v(V_LRD))
    A("s_lshl_b32 %s, %s, 4" % (S_T, S_W))
    A("s_add_u32 %s, %s, %d" % (S_T, S_T, L_ST))
    A("v_mov_b32 %s, %s" % (v(V_LRS), S_T))
    A("s_lshl_b32 s69, %s, 13" % S_IDX)
    get_nonce_shared(T)
    A("s_waitcnt vmcnt(0)")
    stamp(1)
    for d in range(4):
        for p in range(4):
            Ar, Br = VIN + 4 * (2 * p) + d, VIN + 4 * (2 * p + 1) + d
            A("v_perm_b32 %s, %s, %s, %s" % (v(VF + 4 * (2 * d) + p), v(Br), v(Ar), S_PLO))
            A("v_perm_b32 %s, %s, %s, %s" % (v(VF + 4 * (2 * d + 1) + p), v(Br), v(Ar), S_PHI))
    if DRY:
        set_dry()
    a.label("L_att_loop")
    slab(S_L, 7, GQ)
    gate(4)
    slab(S_L, 11, QS)
    def loads():
        for h in range(2):
            A("buffer_load_dwordx4 %s, %s, %s, %s offen offset:%d sc1" % (
                v(QP + 4 * h, 4), v(V_Q), WS, S_OFF, 1024 * h))
    poll(loads, [QP + 2 * k + 1 for k in range(4)], 4, 5, True)
    stamp(2, 4)
    A("ds_write2_b32 %s, %s, %s offset0:0 offset1:1" % (v(V_QW), v(QP), v(QP + 2)))
    A("ds_write2_b32 %s, %s, %s offset0:128 offset1:129" % (v(V_QW), v(QP + 4), v(QP + 6)))
    A("s_waitcnt lgkmcnt(0)")
    for j in range(4):
        A("ds_read_b128 %s, %s offset:%d" % (v(QF + 4 * j, 4), v(V_QR), 64 * j))
    A("s_waitcnt lgkmcnt(0)")
    for j in range(4):
        for Tt in range(2):
            A("v_mfma_f32_16x16x32_bf16 %s, %s, %s, %s" % (
                v(SC_ + 4 * Tt, 4), v(KF + 16 * Tt + 4 * j, 4), v(QF + 4 * j, 4),
                "0" if j == 0 else v(SC_ + 4 * Tt, 4)))
    for k in range(4):
        rbf16_2(SC_ + 2 * k, SC_ + 2 * k + 1, T + k)
    for k in range(8):
        A("v_mul_f32 %s, %s, %s" % (v(SC_ + k), S_C2, v(SC_ + k)))
    for k in range(4):
        rbf16_2(SC_ + 2 * k, SC_ + 2 * k + 1, T + k)
    M_, L_ = T + 8, T + 9
    A("v_max3_f32 %s, %s, %s, %s" % (v(M_), v(SC_), v(SC_ + 1), v(SC_ + 2)))
    A("v_max3_f32 %s, %s, %s, %s" % (v(T), v(SC_ + 3), v(SC_ + 4), v(SC_ + 5)))
    A("v_max3_f32 %s, %s, %s, %s" % (v(M_), v(M_), v(SC_ + 6), v(SC_ + 7)))
    A("v_max_f32 %s, %s, %s" % (v(M_), v(M_), v(T)))
    xrow16("v_max_f32", [M_], [T])
    xrow32("v_max_f32", [M_], [T])
    A("v_mul_f32 %s, %s, %s" % (v(T), S_C1, v(M_)))
    for k in range(8):
        A("v_fma_f32 %s, %s, %s, -%s" % (v(SC_ + k), v(SC_ + k), S_C1, v(T)))
    for k in range(8):
        A("v_exp_f32 %s, %s" % (v(SC_ + k), v(SC_ + k)))
    for k in range(4):
        A("v_cvt_pk_bf16_f32 %s, %s, %s" % (v(PF + k), v(SC_ + 2 * k), v(SC_ + 2 * k + 1)))
    for j in range(8):
        A("v_mfma_f32_16x16x32_bf16 %s, %s, %s, 0" % (v(ACC + 4 * j, 4), v(PF, 4), v(VF + 4 * j, 4)))
    A("v_add_f32 %s, %s, %s" % (v(L_), v(SC_), v(SC_ + 1)))
    A("v_add_f32 %s, %s, %s" % (v(T), v(SC_ + 2), v(SC_ + 3)))
    A("v_add_f32 %s, %s, %s" % (v(T + 1), v(SC_ + 4), v(SC_ + 5)))
    A("v_add_f32 %s, %s, %s" % (v(T + 2), v(SC_ + 6), v(SC_ + 7)))
    A("v_add_f32 %s, %s, %s" % (v(L_), v(L_), v(T)))
    A("v_add_f32 %s, %s, %s" % (v(T + 1), v(T + 1), v(T + 2)))
    A("v_add_f32 %s, %s, %s" % (v(L_), v(L_), v(T + 1)))
    xrow16("v_add_f32", [L_], [T])
    xrow32("v_add_f32", [L_], [T])
    A("s_mov_b64 exec, 0xf")
    A("ds_write_b32 %s, %s" % (v(V_LST), v(M_)))
    A("ds_write_b32 %s, %s offset:64" % (v(V_LST), v(L_)))
    A("s_mov_b64 exec, -1")
    for j in range(0, 8, 2):
        A("ds_write2_b32 %s, %s, %s offset0:%d offset1:%d" % (
            v(V_LO), v(ACC + 4 * j), v(ACC + 4 * (j + 1)), j, j + 1))
    slab(S_OFF, 18, AP)
    A("s_add_u32 s75, %s, 0x%x" % (S_OFF, GDELTA))
    A("s_add_u32 %s, %s, s69" % (S_L, S_OFF))
    A("s_mov_b32 s76, 1")
    A("s_waitcnt lgkmcnt(0)")
    A("s_barrier")
    A("ds_read_b128 %s, %s" % (v(T, 4), v(V_LRS)))
    A("ds_read_b128 %s, %s offset:64" % (v(T + 4, 4), v(V_LRS)))
    for w in range(4):
        A("ds_read_b64 %s, %s offset:%d" % (v(SC_ + 2 * w, 2), v(V_LRD), 2048 * w))
    O = T + 10
    A("v_mov_b32 %s, %s" % (v(O + 1), S_NONCE))
    A("v_mov_b32 %s, %s" % (v(O + 3), S_NONCE))
    A("v_mov_b32 v125, %s" % S_NONCE)
    A("v_mov_b32 v127, %s" % S_NONCE)
    A("s_waitcnt lgkmcnt(0)")
    A("v_max3_f32 v124, %s, %s, %s" % (v(T), v(T + 1), v(T + 2)))
    A("v_max_f32 v124, v124, %s" % v(T + 3))
    for w in range(4):
        A("v_sub_f32 %s, %s, v124" % (v(T + w), v(T + w)))
    for w in range(4):
        A("v_mul_f32 %s, %s, %s" % (v(T + w), S_C1, v(T + w)))
    for w in range(4):
        A("v_exp_f32 %s, %s" % (v(T + w), v(T + w)))
    A("v_mul_f32 v126, %s, %s" % (v(T), v(T + 4)))
    A("v_mul_f32 %s, %s, %s" % (v(O), v(T), v(SC_)))
    A("v_mul_f32 %s, %s, %s" % (v(O + 2), v(T), v(SC_ + 1)))
    for w in range(1, 4):
        A("v_fmac_f32 v126, %s, %s" % (v(T + w), v(T + 4 + w)))
        A("v_fmac_f32 %s, %s, %s" % (v(O), v(T + w), v(SC_ + 2 * w)))
        A("v_fmac_f32 %s, %s, %s" % (v(O + 2), v(T + w), v(SC_ + 2 * w + 1)))
    A("buffer_store_dwordx4 %s, %s, %s, %s offen" % (v(O, 4), v(V_T16), WS, S_OFF))
    A("s_mov_b32 exec_lo, 0x01010101")
    A("s_mov_b32 exec_hi, 0x01010101")
    A("buffer_store_dwordx4 v[124:127], %s, %s, %s offen" % (v(V_PS), WS, S_OFF))
    A("s_mov_b64 exec, -1")
    def gstores():
        lg = a.newlabel("Lgst")
        A("s_cmp_eq_u32 s76, 0")
        A("s_cbranch_scc1 %s" % lg)
        A("s_mov_b32 exec_lo, 0x01010101")
        A("s_mov_b32 exec_hi, 0x01010101")
        A("buffer_store_dwordx4 v[124:127], %s, %s, s75 offen sc1" % (v(V_PS), WS))
        A("s_mov_b64 exec, -1")
        A("buffer_store_dwordx4 %s, %s, %s, s75 offen sc1" % (v(O, 4), v(V_T16), WS))
        A("s_mov_b32 s76, 0")
        a.label(lg)
    stamp(3, 4)
    lcs = a.newlabel("Lcs")
    A("s_cmp_lg_u32 %s, 0" % S_W)
    A("s_cbranch_scc1 %s" % lcs)
    CO, CS, CM = 96, 112, 116
    def loads2():
        for k in range(4):
            A("buffer_load_dwordx4 %s, %s, %s, %s offen offset:%d sc1" % (v(CO + 4 * k, 4), v(V_CO), WS, S_OFF, 1024 * k))
        A("buffer_load_dwordx4 %s, %s, %s, %s offen sc1" % (v(CS, 4), v(V_CS), WS, S_OFF))
        for k in range(4):
            A("buffer_load_dwordx2 %s, %s, %s, %s offen offset:%d sc1" % (v(CM + 2 * k, 2), v(V_CM), WS, S_OFF, 128 * k))
    poll(loads2, [CO + 2 * k + 1 for k in range(8)] + [CS + 1, CS + 3] + [CM + 2 * k + 1 for k in range(4)], 4, 5, True, gstores)
    stamp(4, 4)
    A("v_mov_b32 %s, %s" % (v(M_), v(CS)))
    slab(S_OFF, 11, OS)
    A("v_mov_b32 v5, %s" % S_NONCE)
    rowreduce("v_max_f32", [M_])
    xrow16("v_max_f32", [M_], [T])
    A("v_sub_f32 %s, %s, %s" % (v(T), v(CS), v(M_)))
    for k in range(4):
        A("v_sub_f32 %s, %s, %s" % (v(T + 4 + k), v(CM + 2 * k), v(M_)))
    A("v_mul_f32 %s, %s, %s" % (v(T), S_C1, v(T)))
    for k in range(4):
        A("v_mul_f32 %s, %s, %s" % (v(T + 4 + k), S_C1, v(T + 4 + k)))
    A("v_exp_f32 %s, %s" % (v(T), v(T)))
    for k in range(4):
        A("v_exp_f32 %s, %s" % (v(T + 4 + k), v(T + 4 + k)))
    A("v_mul_f32 %s, %s, %s" % (v(T + 3), v(T), v(CS + 2)))
    A("v_mul_f32 %s, %s, %s" % (v(T + 1), v(T + 4), v(CO)))
    A("v_mul_f32 %s, %s, %s" % (v(T + 2), v(T + 4), v(CO + 2)))
    for k in range(1, 4):
        A("v_fmac_f32 %s, %s, %s" % (v(T + 1), v(T + 4 + k), v(CO + 4 * k)))
        A("v_fmac_f32 %s, %s, %s" % (v(T + 2), v(T + 4 + k), v(CO + 4 * k + 2)))
    for r in (T + 3, T + 1, T + 2):
        A("v_add_f32_dpp %s, %s, %s row_ror:8 row_mask:0xf bank_mask:0xf" % (v(r), v(r), v(r)))
    for sh in (4, 2, 1):
        A("v_add_f32_dpp %s, %s, %s row_ror:%d row_mask:0xf bank_mask:0xf" % (v(T + 3), v(T + 3), v(T + 3), sh))
    xrow16("v_add_f32", [T + 1, T + 2, T + 3], [T + 4, T + 5, T + 6])
    xrow32("v_add_f32", [T + 1, T + 2], [T + 4, T + 5])
    A("v_rcp_f32 %s, %s" % (v(T + 3), v(T + 3)))
    A("v_mul_f32 %s, %s, %s" % (v(T + 1), v(T + 1), v(T + 3)))
    A("v_mul_f32 %s, %s, %s" % (v(T + 2), v(T + 2), v(T + 3)))
    A("v_cvt_pk_bf16_f32 v4, %s, %s" % (v(T + 1), v(T + 2)))
    A("s_mov_b64 exec, 0xff")
    publish_local("buffer_store_dwordx2", "v[4:5]", v(V_OS), S_OFF)
    A("s_mov_b64 exec, -1")
    stamp(5, 4)
    a.label(lcs)
    gstores()
    loop_tail("L_att_loop")


def role_wo():
    a.comment("================= WO role =================")
    a.label("L_wo")
    WF = 32
    OP = 64
    OF = 16
    ACC = 8
    V_W, V_O, V_XP, V_RED, V_LW, V_LR, V_OW, V_OR = 48, 49, 50, 51, 52, 53, 54, 55
    T = 96
    stamp(0)
    A("s_sub_u32 %s, s2, %d" % (S_IDX, B_WO))
    A("s_lshr_b32 %s, %s, 3" % (S_IDX, S_IDX))
    srd(SA, 12, 0x400000)
    A("v_lshlrev_b32 %s, 13, v2" % v(V_W))
    A("v_lshl_add_u32 %s, v3, 1, %s" % (v(V_W), v(V_W)))
    get_nonce_shared(T)
    slab(S_L, 11, QS)
    gate(T)
    A("s_lshl_b32 %s, %s, 19" % (S_OFF, S_G))
    A("s_lshl_b32 %s, %s, 17" % (S_T, S_W))
    A("s_add_u32 %s, %s, %s" % (S_OFF, S_OFF, S_T))
    A("s_lshl_b32 %s, %s, 5" % (S_T, S_IDX))
    A("s_add_u32 %s, %s, %s" % (S_OFF, S_OFF, S_T))
    for j in range(4):
        A("s_add_u32 %s, %s, 0x%x" % (S_T, S_OFF, 32 * j * 1024))
        A("s_add_u32 %s, %s, 4096" % (S_T2, S_T))
        for i in range(8):
            A("buffer_load_ushort %s, %s, %s, %s offen offset:%d%s" % (
                v(OP + 8 * j + i), v(V_W), SA, S_T if i < 4 else S_T2, 1024 * (i & 3), NT))
    A("v_lshlrev_b32 %s, 3, v0" % v(V_O))
    A("s_lshl_b32 %s, %s, 8" % (S_T, S_W))
    A("s_add_u32 %s, %s, 1024" % (S_T, S_T))
    A("v_lshlrev_b32 %s, 2, v1" % v(V_OW))
    A("v_add_u32 %s, %s, %s" % (v(V_OW), S_T, v(V_OW)))
    A("v_lshlrev_b32 %s, 4, v2" % v(V_OR))
    A("v_add_u32 %s, %s, %s" % (v(V_OR), S_T, v(V_OR)))
    A("s_lshl_b32 %s, %s, 7" % (S_T, S_IDX))
    A("v_lshlrev_b32 %s, 3, v3" % v(V_XP))
    A("v_add_u32 %s, %s, %s" % (v(V_XP), S_T, v(V_XP)))
    A("s_lshl_b32 %s, %s, 9" % (S_T, S_IDX))
    A("v_lshlrev_b32 %s, 3, v1" % v(V_RED))
    A("v_add_u32 %s, %s, %s" % (v(V_RED), S_T, v(V_RED)))
    A("s_lshl_b32 %s, %s, 6" % (S_T, S_W))
    A("v_lshlrev_b32 %s, 2, v3" % v(V_LR))
    A("v_add_u32 %s, %s, %s" % (v(V_LW), S_T, v(V_LR)))
    A("s_waitcnt vmcnt(0)")
    for j in range(4):
        for p in range(4):
            A("v_perm_b32 %s, %s, %s, %s" % (v(WF + 4 * j + p), v(OP + 8 * j + 2 * p + 1), v(OP + 8 * j + 2 * p), S_PLO))
    if DRY:
        set_dry()
    a.label("L_wo_loop")
    slab(S_L, 18, AP + 4096)
    gate(T)
    slab(S_L, 11, OS)
    def loads():
        A("buffer_load_dwordx2 %s, %s, %s, %s offen sc1" % (v(OP, 2), v(V_O), WS, S_OFF))
    stamp(1, 4)
    poll(loads, [OP + 1], 4, 5, True)
    stamp(2, 4)
    A("ds_write_b32 %s, %s" % (v(V_OW), v(OP)))
    A("s_waitcnt lgkmcnt(0)")
    for j in range(4):
        A("ds_read_b128 %s, %s offset:%d" % (v(OF + 4 * j, 4), v(V_OR), 64 * j))
    slab(S_OFF, 12, XP)
    A("v_mov_b32 %s, %s" % (v(T + 5), S_NONCE))
    A("s_waitcnt lgkmcnt(0)")
    for j in range(4):
        A("v_mfma_f32_16x16x32_bf16 %s, %s, %s, %s" % (
            v(ACC + 4 * (j & 1), 4), v(OF + 4 * j, 4), v(WF + 4 * j, 4), "0" if j < 2 else v(ACC + 4 * (j & 1), 4)))
    A("v_add_f32 %s, %s, %s" % (v(T), v(ACC), v(ACC + 4)))
    A("ds_write_b32 %s, %s" % (v(V_LW), v(T)))
    A("s_waitcnt lgkmcnt(0)")
    A("s_barrier")
    lsk = a.newlabel("Lwo")
    lred = a.newlabel("Lred")
    A("s_cmp_lg_u32 %s, 0" % S_W)
    A("s_cbranch_scc1 %s" % lred)
    A("s_mov_b64 exec, 0xffff")
    for w in range(4):
        A("ds_read_b32 %s, %s offset:%d" % (v(T + w), v(V_LR), 64 * w))
    A("s_waitcnt lgkmcnt(0)")
    A("v_add_f32 %s, %s, %s" % (v(T), v(T), v(T + 1)))
    A("v_add_f32 %s, %s, %s" % (v(T + 2), v(T + 2), v(T + 3)))
    A("v_add_f32 %s, %s, %s" % (v(T + 4), v(T), v(T + 2)))
    A("buffer_store_dwordx2 %s, %s, %s, %s offen sc1" % (v(T + 4, 2), v(V_XP), WS, S_OFF))
    A("s_mov_b64 exec, -1")
    stamp(3, 4)
    A("s_branch %s" % lsk)
    a.label(lred)
    A("s_cmp_lg_u32 %s, 1" % S_W)
    A("s_cbranch_scc1 %s" % lsk)
    A("s_cmp_ge_u32 %s, 8" % S_IDX)
    A("s_cbranch_scc1 %s" % lsk)
    slab(S_L, 15, FP)
    RP = 64
    def loads3():
        for fi in range(7):
            A("s_add_u32 %s, %s, 0x%x" % (S_T2, S_OFF, fi * 0x1000))
            A("buffer_load_dwordx2 %s, %s, %s, %s offen sc1" % (v(RP + 2 * fi, 2), v(V_RED), WS, S_T2))
    poll(loads3, [RP + 2 * fi + 1 for fi in range(7)], 4, 5, True)
    slab(S_OFF, 12, YP)
    A("v_add_f32 %s, %s, %s" % (v(T + 4), v(RP), v(RP + 2)))
    for fi in range(2, 7):
        A("v_add_f32 %s, %s, %s" % (v(T + 4), v(T + 4), v(RP + 2 * fi)))
    A("buffer_store_dwordx2 %s, %s, %s, %s offen sc1" % (v(T + 4, 2), v(V_RED), WS, S_OFF))
    STAMPW[0] = 1
    stamp(4, 4)
    STAMPW[0] = 0
    a.label(lsk)
    loop_tail("L_wo_loop")


def role_ffn():
    a.comment("================= FFN role =================")
    a.label("L_ffn")
    S0 = 32
    R = [40, 48, 56, 64]
    W2IN = 96
    W2F = 64
    P = 96
    XO = 30
    YF = 96
    ACC1 = 112
    ACC2 = 96
    T = 16
    VB1 = 15
    V_T4, V_T8, V_T16, V_W, VLW, VLR, VST, VRED_W, VRED_R = 5, 6, 7, 8, 9, 10, 11, 12, 13
    V_HW, V_HR, V_FP = 128, 129, 130
    XA, XB_ = 26, 27
    S_F = "s69"

    def frag(j, c):
        base = S0 if j == 0 else R[j - 1]
        return base + 4 * c

    stamp(0)
    A("s_sub_u32 %s, s2, %d" % (S_IDX, B_FFN))
    A("s_lshr_b32 %s, %s, 3" % (S_IDX, S_IDX))
    A("s_mul_i32 %s, %s, 7" % (S_F, S_G))
    A("s_add_u32 %s, %s, %s" % (S_F, S_F, S_IDX))
    A("s_lshl_b32 s68, %s, 12" % S_IDX)
    srd(SA, 16, 0x1C0000)
    srd(SB, 20, 0x1C0000)
    srd(SD, 18, 3584)
    A("v_lshlrev_b32 %s, 2, v0" % v(V_T4))
    A("v_lshlrev_b32 %s, 3, v0" % v(V_T8))
    A("v_lshlrev_b32 %s, 4, v0" % v(V_T16))
    get_nonce_shared(T)
    slab(S_L, 11, QS)
    gate(T)
    A("v_and_b32 v4, 31, v1")
    A("v_lshlrev_b32 v4, 1, v4")
    A("s_lshl_b32 %s, %s, 6" % (S_T, S_F))
    A("buffer_load_ushort %s, v4, %s, %s offen" % (v(VB1), SD, S_T))
    A("s_mov_b32 %s, %d" % (S_T, 8 * 3584))
    A("v_mul_lo_u32 %s, v2, %s" % (v(V_W), S_T))
    A("v_lshl_add_u32 %s, v3, 2, %s" % (v(V_W), v(V_W)))
    A("s_mul_i32 %s, %s, %d" % (S_OFF, S_W, 128 * 3584))
    A("s_lshl_b32 %s, %s, 6" % (S_T, S_F))
    A("s_add_u32 %s, %s, %s" % (S_OFF, S_OFF, S_T))
    for j in range(4):
        for i in range(8):
            A("s_add_u32 %s, %s, 0x%x" % (S_T, S_OFF, (32 * j + i) * 3584))
            A("buffer_load_dword %s, %s, %s, %s offen%s" % (v(R[j] + i), v(V_W), SA, S_T, NT))
    A("v_lshlrev_b32 v4, 13, v2")
    A("v_lshl_add_u32 v4, v3, 4, v4")
    A("s_lshl_b32 %s, %s, 15" % (S_OFF, S_F))
    A("s_lshl_b32 %s, %s, 8" % (S_T, S_W))
    A("s_add_u32 %s, %s, %s" % (S_OFF, S_OFF, S_T))
    A("s_add_u32 %s, %s, 4096" % (S_T2, S_OFF))
    for i in range(8):
        A("buffer_load_dwordx4 %s, v4, %s, %s offen offset:%d%s" % (
            v(W2IN + 4 * i, 4), SB, S_OFF if i < 4 else S_T2, 1024 * (i & 3), NT))
    dense_lds_addrs(VLW, VLR, VST)
    A("s_lshl_b32 %s, %s, 7" % (S_T, S_W))
    A("s_add_u32 %s, %s, %d" % (S_T, S_T, L_RED))
    A("v_lshlrev_b32 %s, 3, v3" % v(VRED_W))
    A("v_add_u32 %s, %s, %s" % (v(VRED_W), S_T, v(VRED_W)))
    A("v_and_b32 v4, 31, v1")
    A("v_lshlrev_b32 %s, 2, v4" % v(VRED_R))
    A("v_add_u32 %s, %d, %s" % (v(VRED_R), L_RED, v(VRED_R)))
    A("s_lshl_b32 %s, %s, 6" % (S_T, S_W))
    A("s_add_u32 %s, %s, %d" % (S_T, S_T, L_H))
    A("v_lshlrev_b32 %s, 1, v4" % v(V_HW))
    A("v_add_u32 %s, %s, %s" % (v(V_HW), S_T, v(V_HW)))
    A("v_lshlrev_b32 %s, 4, v2" % v(V_HR))
    A("v_add_u32 %s, %s, %s" % (v(V_HR), S_T, v(V_HR)))
    A("s_lshl_b32 %s, %s, 10" % (S_T, S_W))
    A("v_lshlrev_b32 %s, 6, v3" % v(V_FP))
    A("v_add_u32 %s, %s, %s" % (v(V_FP), S_T, v(V_FP)))
    A("s_waitcnt vmcnt(0)")
    for j in range(4):
        for p in range(4):
            Ar, Br = R[j] + 2 * p, R[j] + 2 * p + 1
            A("v_perm_b32 %s, %s, %s, %s" % (v(frag(j, 0) + p), v(Br), v(Ar), S_PLO))
            A("v_perm_b32 %s, %s, %s, %s" % (v(frag(j, 1) + p), v(Br), v(Ar), S_PHI))
    for d in range(4):
        for p in range(4):
            Ar, Br = W2IN + 4 * (2 * p) + d, W2IN + 4 * (2 * p + 1) + d
            A("v_perm_b32 %s, %s, %s, %s" % (v(W2F + 4 * (2 * d) + p), v(Br), v(Ar), S_PLO))
            A("v_perm_b32 %s, %s, %s, %s" % (v(W2F + 4 * (2 * d + 1) + p), v(Br), v(Ar), S_PHI))
    A("v_lshlrev_b32 %s, 16, %s" % (v(VB1), v(VB1)))
    if DRY:
        set_dry()
    a.label("L_ffn_loop")
    slab(S_L, 11, OS)
    gate(T)
    stamp(1, 4)
    poll_xpartials(XP, XB2, P, XO, V_T16, V_T8, T, T + 1)
    stamp(2, 4)
    sum_partials(P, XA, XB_)
    rbf16_2(XA, XB_, T + 2)
    A("v_lshlrev_b32 %s, 16, %s" % (v(T + 3), v(XO)))
    A("v_and_b32 %s, 0xffff0000, %s" % (v(T + 4), v(XO)))
    A("v_add_f32 %s, %s, %s" % (v(XA), v(XA), v(T + 3)))
    A("v_add_f32 %s, %s, %s" % (v(XB_), v(XB_), v(T + 4)))
    rbf16_2(XA, XB_, T + 2)
    lsk = a.newlabel("Lxb")
    A("s_cmp_lg_u32 %s, 0" % S_F)
    A("s_cbranch_scc1 %s" % lsk)
    A("v_mov_b32 %s, %s" % (v(XO), v(T + 2)))
    A("v_mov_b32 %s, %s" % (v(XO + 1), S_NONCE))
    A("s_add_u32 %s, %s, 0x%x" % (S_OFF, S_LB, XB1))
    A("buffer_store_dwordx2 %s, %s, %s, %s offen sc1" % (v(XO, 2), v(V_T8), WS, S_OFF))
    a.label(lsk)
    layernorm(XA, XB_, YF, T, VLW, VLR, VST)
    for j in range(4):
        for c in range(2):
            A("v_mfma_f32_16x16x32_bf16 %s, %s, %s, %s" % (
                v(ACC1 + 4 * c, 4), v(YF + 4 * j, 4), v(frag(j, c), 4), "0" if j == 0 else v(ACC1 + 4 * c, 4)))
    A("ds_write2_b32 %s, %s, %s offset0:0 offset1:1" % (v(VRED_W), v(ACC1), v(ACC1 + 4)))
    slab(S_OFF, 15, FP, "s68")
    A("s_add_u32 %s, %s, 0x%x" % (S_T2, S_OFF, GDELTA))
    A("s_waitcnt lgkmcnt(0)")
    A("s_barrier")
    for w in range(4):
        A("ds_read_b32 %s, %s offset:%d" % (v(T + w), v(VRED_R), 128 * w))
    A("s_waitcnt lgkmcnt(0)")
    A("v_add_f32 %s, %s, %s" % (v(T), v(T), v(T + 1)))
    A("v_add_f32 %s, %s, %s" % (v(T + 2), v(T + 2), v(T + 3)))
    A("v_add_f32 %s, %s, %s" % (v(T), v(T), v(T + 2)))
    rbf16_1(T)
    A("v_add_f32 %s, %s, %s" % (v(T), v(T), v(VB1)))
    rbf16_1(T)
    A("v_mul_f32 %s, %s, %s" % (v(T + 1), v(T), v(T)))
    A("v_mul_f32 %s, 0x3d372713, %s" % (v(T + 1), v(T + 1)))
    A("v_fma_f32 %s, %s, %s, %s" % (v(T + 1), v(T + 1), v(T), v(T)))
    A("v_mul_f32 %s, 0xc0135761, %s" % (v(T + 1), v(T + 1)))
    A("v_exp_f32 %s, %s" % (v(T + 1), v(T + 1)))
    A("v_add_f32 %s, 1.0, %s" % (v(T + 1), v(T + 1)))
    A("v_rcp_f32 %s, %s" % (v(T + 1), v(T + 1)))
    A("v_mul_f32 %s, %s, %s" % (v(T), v(T), v(T + 1)))
    A("v_cvt_pk_bf16_f32 %s, %s, %s" % (v(T), v(T), v(T)))
    A("ds_write_b16 %s, %s" % (v(V_HW), v(T)))
    A("s_waitcnt lgkmcnt(0)")
    A("ds_read_b128 %s, %s" % (v(T + 4, 4), v(V_HR)))
    A("s_waitcnt lgkmcnt(0)")
    for j in range(8):
        A("v_mfma_f32_16x16x32_bf16 %s, %s, %s, 0" % (v(ACC2 + 4 * j, 4), v(T + 4, 4), v(W2F + 4 * j, 4)))
    A("s_mov_b64 exec, 0xffff")
    for q in range(4):
        b = ACC2 + 8 * q
        A("v_mov_b32 %s, %s" % (v(b + 2), v(b + 4)))
        A("v_mov_b32 %s, %s" % (v(b + 1), S_NONCE))
        A("v_mov_b32 %s, %s" % (v(b + 3), S_NONCE))
        A("buffer_store_dwordx4 %s, %s, %s, %s offen offset:%d" % (v(b, 4), v(V_FP), WS, S_OFF, 16 * q))
    for q in range(4):
        b = ACC2 + 8 * q
        A("buffer_store_dwordx4 %s, %s, %s, %s offen offset:%d sc1" % (v(b, 4), v(V_FP), WS, S_T2, 16 * q))
    A("s_mov_b64 exec, -1")
    stamp(3, 4)
    loop_tail("L_ffn_loop")


def main():
    hdr = open(REF).read().split("; Override launch geometry")[0]
    a.raw(hdr.rstrip("\n"))
    a.raw("; @launch grid=(%d,1,1) block=(256,1,1) lds=20480" % NWG)
    a.raw('.amdgcn_target "amdgcn-amd-amdhsa--gfx950"')
    a.raw(".text")
    a.raw(".globl %s_kernel" % NAME)
    a.raw(".p2align 8")
    a.raw(".type %s_kernel,@function" % NAME)
    a.raw("%s_kernel:" % NAME)
    prologue()
    role_wq()
    role_att()
    role_wo()
    role_ffn()
    a.label("L_end")
    a.raw("    s_endpgm")
    a.raw('.section .rodata,"a"')
    a.raw(".p2align 6")
    a.raw(".amdhsa_kernel %s_kernel" % NAME)
    a.raw("  .amdhsa_next_free_vgpr 144")
    a.raw("  .amdhsa_next_free_sgpr 88")
    a.raw("  .amdhsa_accum_offset 144")
    a.raw("  .amdhsa_group_segment_fixed_size 0")
    a.raw("  .amdhsa_kernarg_size 104")
    a.raw("  .amdhsa_user_sgpr_count 2")
    a.raw("  .amdhsa_user_sgpr_kernarg_segment_ptr 1")
    a.raw("  .amdhsa_system_sgpr_workgroup_id_x 1")
    a.raw(".end_amdhsa_kernel")
    open(OUT, "w").write(a.text())
    print("wrote", OUT, len(a.lines), "lines")


main()
```

```python
import sys, os
sys.path.insert(0, os.path.dirname(__file__))
from asmlib import Asm

NAME = "interleave_layers__sliding_block_cached__dense_activation_gelu__decode"
OUT = "cdna_kernels/%s.s" % NAME
REF = OUT + ".ref"
if len(sys.argv) > 1:
    OUT = sys.argv[1]

def env(k, d):
    return int(os.environ.get(k, str(d)))

N_WQ, N_ATT, N_WO, N_FFN = 64, 256, 256, 56
B_WQ = 0
B_ATT = B_WQ + N_WQ
B_WO = B_ATT + N_ATT
B_FFN = B_WO + N_WO
NWG = B_FFN + N_FFN

GDELTA = 0x4000000
LSTEP = 0x1000000
DUMMY = 2 * LSTEP
QS, OS, XP, YP, XB1, XB2, FP, AP = 0x0, 0x10000, 0x20000, 0x30000, 0x40000, 0x41000, 0x80000, 0x100000
GQ = 0x50000
LIMIT = 400000
NT = " nt" if env("NT", 1) else ""
DRY = env("DRY", 0)

LOG2E = 0x3fb8aa3b
SCALE = 0x3db504f3

a = Asm()
A = a

S_NONCE, S_G, S_IDX, S_W, S_CNT, S_T = "s30", "s31", "s32", "s33", "s34", "s35"
WS = "s[36:39]"
SA, SB, SC, SD = "s[40:43]", "s[44:47]", "s[48:51]", "s[64:67]"
DBG = "s[52:55]"
S_OFF, S_L, S_GOFF = "s56", "s57", "s58"
S_PLO, S_PHI = "s60", "s61"
S_T2 = "s59"
SM = "s[70:71]"
S_LB, S_LIM, S_ST = "s77", "s78", "s79"
S_C1, S_C2 = "s80", "s81"


def v(n, k=1):
    return "v%d" % n if k == 1 else "v[%d:%d]" % (n, n + k - 1)


def srd(dst, ptr, nbytes):
    d = int(dst[2:].split(":")[0])
    A("s_mov_b32 s%d, s%d" % (d, ptr))
    A("s_and_b32 s%d, s%d, 0xffff" % (d + 1, ptr + 1))
    A("s_mov_b32 s%d, 0x%x" % (d + 2, nbytes))
    A("s_mov_b32 s%d, 0x00020000" % (d + 3))


def tagcheck(tags, t1, t2):
    if len(tags) == 1:
        A("v_cmp_ne_u32 vcc, %s, %s" % (S_NONCE, v(tags[0])))
        return
    if len(tags) == 2:
        A("v_cmp_ne_u32 vcc, %s, %s" % (S_NONCE, v(tags[0])))
        A("v_cmp_ne_u32 %s, %s, %s" % (SM, S_NONCE, v(tags[1])))
        A("s_or_b64 vcc, vcc, %s" % SM)
        return
    A("v_min3_u32 %s, %s, %s, %s" % (v(t1), v(tags[0]), v(tags[1]), v(tags[2])))
    A("v_max3_u32 %s, %s, %s, %s" % (v(t2), v(tags[0]), v(tags[1]), v(tags[2])))
    rest = tags[3:]
    while rest:
        if len(rest) >= 2:
            A("v_min3_u32 %s, %s, %s, %s" % (v(t1), v(t1), v(rest[0]), v(rest[1])))
            A("v_max3_u32 %s, %s, %s, %s" % (v(t2), v(t2), v(rest[0]), v(rest[1])))
            rest = rest[2:]
        else:
            A("v_min_u32 %s, %s, %s" % (v(t1), v(t1), v(rest[0])))
            A("v_max_u32 %s, %s, %s" % (v(t2), v(t2), v(rest[0])))
            rest = rest[1:]
    A("v_cmp_ne_u32 vcc, %s, %s" % (S_NONCE, v(t1)))
    A("v_cmp_ne_u32 %s, %s, %s" % (SM, S_NONCE, v(t2)))
    A("s_or_b64 vcc, vcc, %s" % SM)


def poll(emit_loads, tags, t1, t2, local, hook=None):
    lp = a.newlabel("Lp")
    ld = a.newlabel("Ld")
    A("s_mov_b32 %s, 0" % S_CNT)
    if local:
        A("s_add_u32 %s, %s, 0x%x" % (S_GOFF, S_L, GDELTA))
    a.label(lp)
    if local:
        A("s_and_b32 %s, %s, 15" % (S_T, S_CNT))
        A("s_cmp_eq_u32 %s, 15" % S_T)
        A("s_cselect_b32 %s, %s, %s" % (S_OFF, S_GOFF, S_L))
        if hook is not None:
            lh = a.newlabel("Lh")
            A("s_cbranch_scc0 %s" % lh)
            hook()
            a.label(lh)
    emit_loads()
    A("s_waitcnt vmcnt(0)")
    tagcheck(tags, t1, t2)
    A("s_cbranch_vccz %s" % ld)
    A("s_add_u32 %s, %s, 1" % (S_CNT, S_CNT))
    A("s_cmp_lt_u32 %s, %s" % (S_CNT, S_LIM))
    A("s_cbranch_scc1 %s" % lp)
    a.label(ld)


def get_nonce(t):
    lp = a.newlabel("Ln")
    ld = a.newlabel("Lnd")
    A("s_mov_b32 %s, 0" % S_CNT)
    a.label(lp)
    A("buffer_load_dword %s, off, %s, 0 sc1" % (v(t), DBG))
    A("s_waitcnt vmcnt(0)")
    A("v_readfirstlane_b32 %s, %s" % (S_NONCE, v(t)))
    A("s_cmp_lg_u32 %s, 0" % S_NONCE)
    A("s_cbranch_scc1 %s" % ld)
    A("s_sleep 2")
    A("s_add_u32 %s, %s, 1" % (S_CNT, S_CNT))
    A("s_cmp_lt_u32 %s, %d" % (S_CNT, LIMIT))
    A("s_cbranch_scc1 %s" % lp)
    a.label(ld)


L_NONCE = 12288
def get_nonce_shared(t):
    lsk = a.newlabel("Lns")
    A("v_mov_b32 %s, %d" % (v(t + 2), L_NONCE))
    A("s_cmp_lg_u32 %s, 0" % S_W)
    A("s_cbranch_scc1 %s" % lsk)
    get_nonce(t)
    A("v_mov_b32 %s, %s" % (v(t), S_NONCE))
    A("ds_write_b32 %s, %s" % (v(t + 2), v(t)))
    A("s_waitcnt lgkmcnt(0)")
    a.label(lsk)
    A("s_barrier")
    A("ds_read_b32 %s, %s" % (v(t), v(t + 2)))
    A("s_waitcnt lgkmcnt(0)")
    A("v_readfirstlane_b32 %s, %s" % (S_NONCE, v(t)))


def gate(t):
    lsk = a.newlabel("Lgs")
    lp = a.newlabel("Lgp")
    A("s_cmp_lg_u32 %s, 0" % S_W)
    A("s_cbranch_scc1 %s" % lsk)
    A("s_mov_b32 %s, 0" % S_CNT)
    A("s_add_u32 %s, %s, 0x%x" % (S_GOFF, S_L, GDELTA))
    a.label(lp)
    A("s_and_b32 %s, %s, 15" % (S_T, S_CNT))
    A("s_cmp_eq_u32 %s, 15" % S_T)
    A("s_cselect_b32 %s, %s, %s" % (S_OFF, S_GOFF, S_L))
    A("buffer_load_dword %s, off, %s, %s offset:4 sc1" % (v(t), WS, S_OFF))
    A("s_waitcnt vmcnt(0)")
    A("v_readfirstlane_b32 %s, %s" % (S_T, v(t)))
    A("s_cmp_eq_u32 %s, %s" % (S_T, S_NONCE))
    A("s_cbranch_scc1 %s" % lsk)
    A("s_sleep 1")
    A("s_add_u32 %s, %s, 1" % (S_CNT, S_CNT))
    A("s_cmp_lt_u32 %s, %s" % (S_CNT, S_LIM))
    A("s_cbranch_scc1 %s" % lp)
    a.label(lsk)
    A("s_barrier")


def slab(dst, shift, const, extra=None):
    A("s_lshl_b32 %s, %s, %d" % (dst, S_G, shift))
    A("s_add_u32 %s, %s, %s" % (dst, dst, S_LB))
    if extra:
        A("s_add_u32 %s, %s, %s" % (dst, dst, extra))
    if const:
        A("s_add_u32 %s, %s, 0x%x" % (dst, dst, const))


def rowreduce(op, regs):
    for sh in (8, 4, 2, 1):
        for r in regs:
            A("%s_dpp %s, %s, %s row_ror:%d row_mask:0xf bank_mask:0xf" % (op, v(r), v(r), v(r), sh))


def xrow16(op, regs, tmps):
    for r, t in zip(regs, tmps):
        A("v_mov_b32 %s, %s" % (v(t), v(r)))
    for r, t in zip(regs, tmps):
        A("v_permlane16_swap_b32 %s, %s" % (v(r), v(t)))
    for r, t in zip(regs, tmps):
        A("%s %s, %s, %s" % (op, v(r), v(r), v(t)))


def xrow32(op, regs, tmps):
    for r, t in zip(regs, tmps):
        A("v_mov_b32 %s, %s" % (v(t), v(r)))
    for r, t in zip(regs, tmps):
        A("v_permlane32_swap_b32 %s, %s" % (v(r), v(t)))
    for r, t in zip(regs, tmps):
        A("%s %s, %s, %s" % (op, v(r), v(r), v(t)))


def rbf16_2(ra, rb, t):
    A("v_cvt_pk_bf16_f32 %s, %s, %s" % (v(t), v(ra), v(rb)))
    A("v_lshlrev_b32 %s, 16, %s" % (v(ra), v(t)))
    A("v_and_b32 %s, 0xffff0000, %s" % (v(rb), v(t)))


def rbf16_1(ra):
    A("v_cvt_pk_bf16_f32 %s, %s, %s" % (v(ra), v(ra), v(ra)))
    A("v_lshlrev_b32 %s, 16, %s" % (v(ra), v(ra)))


def publish_local(instr, data, voff, base):
    A("%s %s, %s, %s, %s offen" % (instr, data, voff, WS, base))
    A("s_add_u32 %s, %s, 0x%x" % (S_T2, base, GDELTA))
    A("%s %s, %s, %s, %s offen sc1" % (instr, data, voff, WS, S_T2))


STAMP = env("STAMP", 0)
STAMP_BASE = 0x10000000
STAMPW = [0]
def stamp(i, per_layer=0):
    if not STAMP:
        return
    lsk = a.newlabel("Lst")
    A("s_cmp_lg_u32 %s, %d" % (S_W, STAMPW[0]))
    A("s_cbranch_scc1 %s" % lsk)
    A("s_cmp_eq_u32 %s, 0" % S_LIM)
    A("s_cbranch_scc1 %s" % lsk)
    A("s_memrealtime s[72:73]")
    A("s_lshl_b32 s74, s2, 7")
    A("s_add_u32 s74, s74, 0x%x" % (STAMP_BASE + 4 * i))
    if per_layer:
        A("s_lshr_b32 s82, %s, 24" % S_LB)
        A("s_mul_i32 s82, s82, %d" % (4 * per_layer))
        A("s_add_u32 s74, s74, s82")
    A("s_waitcnt lgkmcnt(0)")
    A("v_mov_b32 v4, s72")
    A("buffer_store_dword v4, off, %s, s74" % WS)
    a.label(lsk)


L_STATS, L_Y, L_RED, L_H = 0, 64, 2048, 3328


def layernorm(xa, xb, yf, T, vlds_y_w, vlds_y_r, vlds_st):
    s1, s2 = T, T + 1
    A("v_add_f32 %s, %s, %s" % (v(s1), v(xa), v(xb)))
    A("v_mul_f32 %s, %s, %s" % (v(s2), v(xa), v(xa)))
    A("v_fmac_f32 %s, %s, %s" % (v(s2), v(xb), v(xb)))
    rowreduce("v_add_f32", [s1, s2])
    xrow16("v_add_f32", [s1, s2], [T + 2, T + 3])
    xrow32("v_add_f32", [s1, s2], [T + 2, T + 3])
    A("ds_write_b64 %s, %s" % (v(vlds_st), v(s1, 2)))
    A("v_mov_b32 %s, 0" % v(T + 9))
    A("s_waitcnt lgkmcnt(0)")
    A("s_barrier")
    A("ds_read_b128 %s, %s offset:%d" % (v(T, 4), v(T + 9), L_STATS))
    A("ds_read_b128 %s, %s offset:%d" % (v(T + 4, 4), v(T + 9), L_STATS + 16))
    A("s_waitcnt lgkmcnt(0)")
    A("v_add_f32 %s, %s, %s" % (v(T), v(T), v(T + 2)))
    A("v_add_f32 %s, %s, %s" % (v(T + 1), v(T + 1), v(T + 3)))
    A("v_add_f32 %s, %s, %s" % (v(T + 4), v(T + 4), v(T + 6)))
    A("v_add_f32 %s, %s, %s" % (v(T + 5), v(T + 5), v(T + 7)))
    A("v_add_f32 %s, %s, %s" % (v(T), v(T), v(T + 4)))
    A("v_add_f32 %s, %s, %s" % (v(T + 1), v(T + 1), v(T + 5)))
    A("v_mul_f32 %s, 0x3b000000, %s" % (v(T), v(T)))
    A("v_mul_f32 %s, 0x3b000000, %s" % (v(T + 1), v(T + 1)))
    A("v_fma_f32 %s, -%s, %s, %s" % (v(T + 1), v(T), v(T), v(T + 1)))
    A("v_max_f32 %s, 0, %s" % (v(T + 1), v(T + 1)))
    rbf16_2(T, T + 1, T + 2)
    A("v_add_f32 %s, 0x3727c5ac, %s" % (v(T + 1), v(T + 1)))
    A("v_sub_f32 %s, %s, %s" % (v(T + 4), v(xa), v(T)))
    A("v_sub_f32 %s, %s, %s" % (v(T + 5), v(xb), v(T)))
    rbf16_1(T + 1)
    A("v_sqrt_f32 %s, %s" % (v(T + 1), v(T + 1)))
    rbf16_2(T + 4, T + 5, T + 2)
    rbf16_1(T + 1)
    A("v_rcp_f32 %s, %s" % (v(T + 1), v(T + 1)))
    A("v_mul_f32 %s, %s, %s" % (v(T + 4), v(T + 4), v(T + 1)))
    A("v_mul_f32 %s, %s, %s" % (v(T + 5), v(T + 5), v(T + 1)))
    A("v_cvt_pk_bf16_f32 %s, %s, %s" % (v(T + 2), v(T + 4), v(T + 5)))
    A("ds_write_b32 %s, %s" % (v(vlds_y_w), v(T + 2)))
    A("s_waitcnt lgkmcnt(0)")
    for j in range(4):
        A("ds_read_b128 %s, %s offset:%d" % (v(yf + 4 * j, 4), v(vlds_y_r), 64 * j))
    A("s_waitcnt lgkmcnt(0)")


def dense_lds_addrs(vw, vr, vst):
    A("s_lshl_b32 %s, %s, 8" % (S_T, S_W))
    A("s_add_u32 %s, %s, %d" % (S_T, S_T, L_Y))
    A("v_lshlrev_b32 %s, 2, v1" % v(vw))
    A("v_add_u32 %s, %s, %s" % (v(vw), S_T, v(vw)))
    A("v_lshlrev_b32 %s, 4, v2" % v(vr))
    A("v_add_u32 %s, %s, %s" % (v(vr), S_T, v(vr)))
    A("s_lshl_b32 %s, %s, 3" % (S_T, S_W))
    A("v_mov_b32 %s, %s" % (v(vst), S_T))


def poll_xpartials(slab_off, xold_off, P, XO, vt16, vt8, t1, t2):
    def loads():
        for g in range(8):
            A("s_add_u32 %s, %s, 0x%x" % (S_OFF, S_LB, slab_off + g * 0x1000))
            A("buffer_load_dwordx4 %s, %s, %s, %s offen sc1" % (v(P + 4 * g, 4), v(vt16), WS, S_OFF))
        A("s_add_u32 %s, %s, 0x%x" % (S_OFF, S_LB, xold_off))
        A("buffer_load_dwordx2 %s, %s, %s, %s offen sc1" % (v(XO, 2), v(vt8), WS, S_OFF))
    tags = []
    for g in range(8):
        tags += [P + 4 * g + 1, P + 4 * g + 3]
    tags.append(XO + 1)
    poll(loads, tags, t1, t2, False)


def sum_partials(P, ra, rb):
    A("v_add_f32 %s, %s, %s" % (v(ra), v(P), v(P + 4)))
    A("v_add_f32 %s, %s, %s" % (v(rb), v(P + 2), v(P + 6)))
    for g in range(2, 8):
        A("v_add_f32 %s, %s, %s" % (v(ra), v(ra), v(P + 4 * g)))
        A("v_add_f32 %s, %s, %s" % (v(rb), v(rb), v(P + 4 * g + 2)))


def set_dry():
    A("s_mov_b32 %s, 0x%x" % (S_LB, DUMMY))
    A("s_mov_b32 %s, 0" % S_LIM)


def set_real(lb):
    A("s_mov_b32 %s, 0x%x" % (S_LB, lb))
    A("s_mov_b32 %s, %d" % (S_LIM, LIMIT))


def loop_tail(ltop):
    l1 = a.newlabel("Lt")
    A("s_cmp_lg_u32 %s, 0" % S_LIM)
    A("s_cbranch_scc1 %s" % l1)
    set_real(0)
    A("s_branch %s" % ltop)
    a.label(l1)
    A("s_cmp_lg_u32 %s, 0" % S_LB)
    A("s_cbranch_scc1 L_end")
    A("s_mov_b32 %s, 0x%x" % (S_LB, LSTEP))
    A("s_branch %s" % ltop)


def prologue():
    A("s_cmp_ge_u32 s2, %d" % NWG)
    A("s_cbranch_scc1 L_end")
    A("s_load_dwordx16 s[4:19], s[0:1], 0")
    A("s_load_dwordx8 s[20:27], s[0:1], 64")
    A("s_load_dwordx2 s[28:29], s[0:1], 96")
    A("v_and_b32 v1, 63, v0")
    A("v_lshrrev_b32 v2, 4, v1")
    A("v_and_b32 v3, 15, v0")
    A("v_lshrrev_b32 v4, 6, v0")
    A("v_readfirstlane_b32 %s, v4" % S_W)
    A("s_and_b32 %s, s2, 7" % S_G)
    A("s_mov_b32 %s, 0x05040100" % S_PLO)
    A("s_mov_b32 %s, 0x07060302" % S_PHI)
    A("s_mov_b32 %s, 0x%x" % (S_C1, LOG2E))
    A("s_mov_b32 %s, 0x%x" % (S_C2, SCALE))
    A("s_mov_b32 %s, 0" % S_NONCE)
    set_real(0)
    A("s_waitcnt lgkmcnt(0)")
    srd(WS, 28, 0x20000000)
    srd(DBG, 26, 256)
    A("s_cmp_ge_u32 s2, %d" % B_FFN)
    A("s_cbranch_scc1 L_ffn")
    A("s_cmp_ge_u32 s2, %d" % B_WO)
    A("s_cbranch_scc1 L_wo")
    A("s_cmp_ge_u32 s2, %d" % B_ATT)
    A("s_cbranch_scc1 L_att")


def role_wq():
    a.comment("================= WQ role =================")
    S0 = 32
    R = [48, 64, 80, 128]
    P = 96
    XO = 30
    YF = 96
    ACC = 112
    T = 16
    VX, VB2 = 14, 15
    V_T4, V_T8, V_T16, V_W, VLW, VLR, VST, VRED_W, VRED_R = 5, 6, 7, 8, 9, 10, 11, 12, 13
    XA, XB_, B2A, B2B = 26, 27, 28, 29

    def frag(j, c):
        base = S0 if j == 0 else R[j - 1]
        return base + 4 * c

    lskip = a.newlabel("Lnn")
    A("s_or_b32 %s, s2, %s" % (S_T, S_W))
    A("s_cmp_lg_u32 %s, 0" % S_T)
    A("s_cbranch_scc1 %s" % lskip)
    A("s_memrealtime s[62:63]")
    A("s_waitcnt lgkmcnt(0)")
    A("s_or_b32 s62, s62, 1")
    A("v_mov_b32 v5, s62")
    A("buffer_store_dword v5, off, %s, 0 sc1" % DBG)
    a.label(lskip)

    stamp(0)
    A("s_lshr_b32 %s, s2, 3" % S_IDX)
    srd(SA, 10, 0x400000)
    srd(SB, 4, 1024)
    srd(SC, 22, 1024)
    srd(SD, 24, 1024)
    A("v_lshlrev_b32 %s, 2, v0" % v(V_T4))
    A("v_lshlrev_b32 %s, 3, v0" % v(V_T8))
    A("v_lshlrev_b32 %s, 4, v0" % v(V_T16))
    A("buffer_load_dword %s, %s, %s, 0 offen" % (v(VX), v(V_T4), SB))
    A("buffer_load_dword %s, %s, %s, 0 offen" % (v(VB2), v(V_T4), SC))
    A("v_lshlrev_b32 %s, 16, v2" % v(V_W))
    A("v_lshl_add_u32 %s, v3, 3, %s" % (v(V_W), v(V_W)))
    A("s_lshl_b32 %s, %s, 20" % (S_OFF, S_W))
    A("s_lshl_b32 %s, %s, 10" % (S_T, S_G))
    A("s_add_u32 %s, %s, %s" % (S_OFF, S_OFF, S_T))
    A("s_lshl_b32 %s, %s, 7" % (S_T, S_IDX))
    A("s_add_u32 %s, %s, %s" % (S_OFF, S_OFF, S_T))
    for j in range(4):
        for i in range(8):
            A("s_add_u32 %s, %s, 0x%x" % (S_T, S_OFF, (32 * j + i) * 8192))
            A("buffer_load_dwordx2 %s, %s, %s, %s offen%s" % (v(R[j] + 2 * i, 2), v(V_W), SA, S_T, NT))
    dense_lds_addrs(VLW, VLR, VST)
    A("s_lshl_b32 %s, %s, 8" % (S_T, S_W))
    A("s_add_u32 %s, %s, %d" % (S_T, S_T, L_RED))
    A("v_lshlrev_b32 %s, 4, v3" % v(VRED_W))
    A("v_add_u32 %s, %s, %s" % (v(VRED_W), S_T, v(VRED_W)))
    A("v_add_u32 %s, %d, %s" % (v(VRED_R), L_RED, v(V_T8)))
    A("s_lshl_b32 s69, %s, 8" % S_IDX)
    if DRY:
        A("s_mov_b32 %s, 0" % S_ST)
        set_dry()
        A("v_mov_b32 %s, 0" % v(XA))
        A("v_mov_b32 %s, 0" % v(XB_))
        A("s_branch L_wqA")
    a.label("L_wq_init")
    set_real(0)
    A("s_mov_b32 %s, 1" % S_ST)
    get_nonce_shared(T)
    A("s_waitcnt vmcnt(0)")
    stamp(1)
    for j in range(4):
        for p in range(4):
            A0, A1, B0, B1 = R[j] + 4 * p, R[j] + 4 * p + 1, R[j] + 4 * p + 2, R[j] + 4 * p + 3
            A("v_perm_b32 %s, %s, %s, %s" % (v(frag(j, 0) + p), v(B0), v(A0), S_PLO))
            A("v_perm_b32 %s, %s, %s, %s" % (v(frag(j, 1) + p), v(B0), v(A0), S_PHI))
            A("v_perm_b32 %s, %s, %s, %s" % (v(frag(j, 2) + p), v(B1), v(A1), S_PLO))
            A("v_perm_b32 %s, %s, %s, %s" % (v(frag(j, 3) + p), v(B1), v(A1), S_PHI))
    A("v_lshlrev_b32 %s, 16, %s" % (v(B2A), v(VB2)))
    A("v_and_b32 %s, 0xffff0000, %s" % (v(B2B), v(VB2)))
    A("v_lshlrev_b32 %s, 16, %s" % (v(XA), v(VX)))
    A("v_and_b32 %s, 0xffff0000, %s" % (v(XB_), v(VX)))
    A("v_mov_b32 %s, %s" % (v(T + 2), v(VX)))

    a.label("L_wqA")
    lsk = a.newlabel("Lan")
    A("s_or_b32 %s, %s, %s" % (S_T, S_IDX, S_W))
    A("s_cmp_lg_u32 %s, 0" % S_T)
    A("s_cbranch_scc1 %s" % lsk)
    A("v_mov_b32 %s, %s" % (v(T + 8), S_NONCE))
    A("v_mov_b32 %s, %s" % (v(T + 9), S_NONCE))
    slab(S_OFF, 7, GQ)
    A("s_mov_b64 exec, 1")
    publish_local("buffer_store_dwordx2", v(T + 8, 2), v(V_T8), S_OFF)
    A("s_mov_b64 exec, -1")
    a.label(lsk)
    lsk = a.newlabel("Lxb")
    A("s_cmp_lg_u32 s2, 0")
    A("s_cbranch_scc1 %s" % lsk)
    A("v_mov_b32 %s, %s" % (v(XO), v(T + 2)))
    A("v_mov_b32 %s, %s" % (v(XO + 1), S_NONCE))
    A("s_add_u32 %s, %s, 0x%x" % (S_OFF, S_LB, XB2))
    A("buffer_store_dwordx2 %s, %s, %s, %s offen sc1" % (v(XO, 2), v(V_T8), WS, S_OFF))
    a.label(lsk)
    layernorm(XA, XB_, YF, T, VLW, VLR, VST)
    for j in range(4):
        for c in range(4):
            A("v_mfma_f32_16x16x32_bf16 %s, %s, %s, %s" % (
                v(ACC + 4 * c, 4), v(YF + 4 * j, 4), v(frag(j, c), 4), "0" if j == 0 else v(ACC + 4 * c, 4)))
    for c in range(4):
        A("ds_write_b32 %s, %s offset:%d" % (v(VRED_W), v(ACC + 4 * c), 4 * c))
    slab(S_OFF, 11, QS, "s69")
    A("s_waitcnt lgkmcnt(0)")
    A("s_barrier")
    lsk = a.newlabel("Lq")
    A("s_cmp_lg_u32 %s, 0" % S_W)
    A("s_cbranch_scc1 %s" % lsk)
    A("s_mov_b32 exec_hi, 0")
    for w in range(4):
        A("ds_read_b64 %s, %s offset:%d" % (v(T + 2 * w, 2), v(VRED_R), 256 * w))
    A("s_waitcnt lgkmcnt(0)")
    A("v_add_f32 %s, %s, %s" % (v(T), v(T), v(T + 2)))
    A("v_add_f32 %s, %s, %s" % (v(T + 1), v(T + 1), v(T + 3)))
    A("v_add_f32 %s, %s, %s" % (v(T + 4), v(T + 4), v(T + 6)))
    A("v_add_f32 %s, %s, %s" % (v(T + 5), v(T + 5), v(T + 7)))
    A("v_add_f32 %s, %s, %s" % (v(T), v(T), v(T + 4)))
    A("v_add_f32 %s, %s, %s" % (v(T + 1), v(T + 1), v(T + 5)))
    A("v_cvt_pk_bf16_f32 %s, %s, %s" % (v(T), v(T), v(T + 1)))
    A("v_mov_b32 %s, %s" % (v(T + 1), S_NONCE))
    publish_local("buffer_store_dwordx2", v(T, 2), v(V_T8), S_OFF)
    A("s_mov_b64 exec, -1")
    a.label(lsk)
    stamp(2, 2)
    A("s_cmp_eq_u32 %s, 0" % S_ST)
    A("s_cbranch_scc1 L_wq_init")
    l4 = a.newlabel("Lst4")
    A("s_cmp_eq_u32 %s, 4" % S_ST)
    A("s_cbranch_scc1 %s" % l4)
    if DRY:
        A("s_mov_b32 %s, 2" % S_ST)
        set_dry()
    else:
        A("s_mov_b32 %s, 3" % S_ST)
    A("s_branch L_wqB")
    a.label(l4)
    A("s_cmp_lg_u32 s2, 0")
    A("s_cbranch_scc1 L_end")
    A("s_mov_b32 %s, 5" % S_ST)

    a.label("L_wqB")
    slab(S_L, 15, FP)
    gate(T)
    poll_xpartials(YP, XB1, P, XO, V_T16, V_T8, T, T + 1)
    sum_partials(P, XA, XB_)
    rbf16_2(XA, XB_, T + 2)
    A("v_add_f32 %s, %s, %s" % (v(XA), v(XA), v(B2A)))
    A("v_add_f32 %s, %s, %s" % (v(XB_), v(XB_), v(B2B)))
    rbf16_2(XA, XB_, T + 2)
    A("v_lshlrev_b32 %s, 16, %s" % (v(T + 3), v(XO)))
    A("v_and_b32 %s, 0xffff0000, %s" % (v(T + 4), v(XO)))
    A("v_add_f32 %s, %s, %s" % (v(XA), v(XA), v(T + 3)))
    A("v_add_f32 %s, %s, %s" % (v(XB_), v(XB_), v(T + 4)))
    rbf16_2(XA, XB_, T + 2)
    stamp(3, 2)
    l3 = a.newlabel("Lst3")
    l5 = a.newlabel("Lst5")
    A("s_cmp_eq_u32 %s, 3" % S_ST)
    A("s_cbranch_scc1 %s" % l3)
    A("s_cmp_eq_u32 %s, 5" % S_ST)
    A("s_cbranch_scc1 %s" % l5)
    A("s_mov_b32 %s, 3" % S_ST)
    set_real(0)
    A("s_branch L_wqB")
    a.label(l3)
    A("s_mov_b32 %s, 4" % S_ST)
    A("s_mov_b32 %s, 0x%x" % (S_LB, LSTEP))
    A("s_branch L_wqA")
    a.label(l5)
    A("buffer_store_dword %s, %s, %s, 0 offen" % (v(T + 2), v(V_T4), SD))
    if env("DBGT", 0):
        A("s_memrealtime s[62:63]")
        A("s_waitcnt lgkmcnt(0)")
        A("s_sub_u32 s62, s62, %s" % S_NONCE)
        A("v_mov_b32 v5, s62")
        A("buffer_store_dword v5, off, %s, 0 offset:4 sc1" % DBG)
    A("s_branch L_end")


def role_att():
    a.comment("================= ATT role =================")
    a.label("L_att")
    KF = 32
    VF = 64
    VIN = 96
    QP = 96
    QF = 16
    SC_ = 8
    PF = 4
    ACC = 96
    V_K, V_V, V_Q, V_T16, V_CO, V_CS, V_OS, V_LO, V_LST, V_LRD, V_LRS = (
        128, 129, 130, 131, 132, 133, 134, 135, 136, 137, 138)
    V_QW, V_QR, V_PS, V_CM = 139, 140, 142, 143
    T = 16
    L_ST = 8192
    L_Q = 12544

    stamp(0)
    A("s_sub_u32 %s, s2, %d" % (S_IDX, B_ATT))
    A("s_lshr_b32 %s, %s, 3" % (S_IDX, S_IDX))
    srd(SA, 6, 0x8000000)
    srd(SB, 8, 0x8000000)
    A("v_lshlrev_b32 %s, 8, v3" % v(V_K))
    A("v_lshl_add_u32 %s, v2, 4, %s" % (v(V_K), v(V_K)))
    A("v_lshlrev_b32 %s, 10, v2" % v(V_V))
    A("v_lshl_add_u32 %s, v3, 4, %s" % (v(V_V), v(V_V)))
    A("s_lshl_b32 %s, %s, 24" % (S_OFF, S_G))
    A("s_lshl_b32 %s, %s, 15" % (S_T, S_IDX))
    A("s_add_u32 %s, %s, %s" % (S_OFF, S_OFF, S_T))
    A("s_lshl_b32 %s, %s, 13" % (S_T, S_W))
    A("s_add_u32 %s, %s, %s" % (S_OFF, S_OFF, S_T))
    A("s_add_u32 %s, %s, 0x%x" % (S_OFF, S_OFF, 61440 * 256))
    A("s_add_u32 %s, %s, 4096" % (S_T2, S_OFF))
    for Tt in range(2):
        for j in range(4):
            A("buffer_load_dwordx4 %s, %s, %s, %s offen offset:%d%s" % (
                v(KF + 16 * Tt + 4 * j, 4), v(V_K), SA, S_OFF if Tt == 0 else S_T2, 64 * j, NT))
    for i in range(8):
        A("buffer_load_dwordx4 %s, %s, %s, %s offen offset:%d%s" % (
            v(VIN + 4 * i, 4), v(V_V), SB, S_OFF if i < 4 else S_T2, 256 * (i & 3), NT))
    A("v_lshrrev_b32 v4, 2, v3")
    A("v_add_u32 v4, v4, v3")
    A("v_and_b32 v4, 3, v4")
    A("v_lshlrev_b32 %s, 4, v1" % v(V_Q))
    A("s_lshl_b32 %s, %s, 10" % (S_T, S_W))
    A("s_add_u32 %s, %s, %d" % (S_T, S_T, L_Q))
    A("v_lshlrev_b32 %s, 3, v1" % v(V_QW))
    A("v_add_u32 %s, %s, %s" % (v(V_QW), S_T, v(V_QW)))
    A("v_lshlrev_b32 %s, 8, v4" % v(V_QR))
    A("v_lshl_add_u32 %s, v2, 4, %s" % (v(V_QR), v(V_QR)))
    A("v_add_u32 %s, %s, %s" % (v(V_QR), S_T, v(V_QR)))
    A("v_lshrrev_b32 v4, 3, v0")
    A("v_lshlrev_b32 v4, 13, v4")
    A("v_and_b32 v5, 7, v0")
    A("v_lshl_add_u32 %s, v5, 4, v4" % v(V_T16))
    A("s_lshl_b32 %s, %s, 7" % (S_T, S_IDX))
    A("v_add_u32 %s, %s, %s" % (v(V_T16), S_T, v(V_T16)))
    A("s_lshl_b32 %s, %s, 4" % (S_T, S_IDX))
    A("s_add_u32 %s, %s, 4096" % (S_T, S_T))
    A("v_add_u32 %s, %s, v4" % (v(V_PS), S_T))
    A("v_lshlrev_b32 %s, 4, v1" % v(V_CO))
    A("v_and_b32 v4, 31, v1")
    A("v_lshlrev_b32 v4, 4, v4")
    A("v_add_u32 %s, 4096, v4" % v(V_CS))
    A("v_lshrrev_b32 v4, 3, v1")
    A("v_lshlrev_b32 v4, 4, v4")
    A("v_add_u32 %s, 4096, v4" % v(V_CM))
    A("s_lshl_b32 %s, %s, 6" % (S_T, S_IDX))
    A("v_lshlrev_b32 %s, 3, v1" % v(V_OS))
    A("v_add_u32 %s, %s, %s" % (v(V_OS), S_T, v(V_OS)))
    A("s_lshl_b32 %s, %s, 11" % (S_T, S_W))
    A("v_lshlrev_b32 %s, 9, v2" % v(V_LO))
    A("v_lshl_add_u32 %s, v3, 5, %s" % (v(V_LO), v(V_LO)))
    A("v_add_u32 %s, %s, %s" % (v(V_LO), S_T, v(V_LO)))
    A("s_lshl_b32 %s, %s, 2" % (S_T, S_W))
    A("s_add_u32 %s, %s, %d" % (S_T, S_T, L_ST))
    A("v_and_b32 v4, 3, v3")
    A("v_lshlrev_b32 %s, 4, v4" % v(V_LST))
    A("v_add_u32 %s, %s, %s" % (v(V_LST), S_T, v(V_LST)))
    A("v_lshlrev_b32 %s, 3, v0" % v(V_LRD))
    A("s_lshl_b32 %s, %s, 4" % (S_T, S_W))
    A("s_add_u32 %s, %s, %d" % (S_T, S_T, L_ST))
    A("v_mov_b32 %s, %s" % (v(V_LRS), S_T))
    A("s_lshl_b32 s69, %s, 13" % S_IDX)
    get_nonce_shared(T)
    A("s_waitcnt vmcnt(0)")
    stamp(1)
    for d in range(4):
        for p in range(4):
            Ar, Br = VIN + 4 * (2 * p) + d, VIN + 4 * (2 * p + 1) + d
            A("v_perm_b32 %s, %s, %s, %s" % (v(VF + 4 * (2 * d) + p), v(Br), v(Ar), S_PLO))
            A("v_perm_b32 %s, %s, %s, %s" % (v(VF + 4 * (2 * d + 1) + p), v(Br), v(Ar), S_PHI))
    if DRY:
        set_dry()
    a.label("L_att_loop")
    slab(S_L, 7, GQ)
    gate(4)
    slab(S_L, 11, QS)
    def loads():
        for h in range(2):
            A("buffer_load_dwordx4 %s, %s, %s, %s offen offset:%d sc1" % (
                v(QP + 4 * h, 4), v(V_Q), WS, S_OFF, 1024 * h))
    poll(loads, [QP + 2 * k + 1 for k in range(4)], 4, 5, True)
    stamp(2, 4)
    A("ds_write2_b32 %s, %s, %s offset0:0 offset1:1" % (v(V_QW), v(QP), v(QP + 2)))
    A("ds_write2_b32 %s, %s, %s offset0:128 offset1:129" % (v(V_QW), v(QP + 4), v(QP + 6)))
    A("s_waitcnt lgkmcnt(0)")
    for j in range(4):
        A("ds_read_b128 %s, %s offset:%d" % (v(QF + 4 * j, 4), v(V_QR), 64 * j))
    A("s_waitcnt lgkmcnt(0)")
    for j in range(4):
        for Tt in range(2):
            A("v_mfma_f32_16x16x32_bf16 %s, %s, %s, %s" % (
                v(SC_ + 4 * Tt, 4), v(KF + 16 * Tt + 4 * j, 4), v(QF + 4 * j, 4),
                "0" if j == 0 else v(SC_ + 4 * Tt, 4)))
    for k in range(4):
        rbf16_2(SC_ + 2 * k, SC_ + 2 * k + 1, T + k)
    for k in range(8):
        A("v_mul_f32 %s, %s, %s" % (v(SC_ + k), S_C2, v(SC_ + k)))
    for k in range(4):
        rbf16_2(SC_ + 2 * k, SC_ + 2 * k + 1, T + k)
    M_, L_ = T + 8, T + 9
    A("v_max3_f32 %s, %s, %s, %s" % (v(M_), v(SC_), v(SC_ + 1), v(SC_ + 2)))
    A("v_max3_f32 %s, %s, %s, %s" % (v(T), v(SC_ + 3), v(SC_ + 4), v(SC_ + 5)))
    A("v_max3_f32 %s, %s, %s, %s" % (v(M_), v(M_), v(SC_ + 6), v(SC_ + 7)))
    A("v_max_f32 %s, %s, %s" % (v(M_), v(M_), v(T)))
    xrow16("v_max_f32", [M_], [T])
    xrow32("v_max_f32", [M_], [T])
    A("v_mul_f32 %s, %s, %s" % (v(T), S_C1, v(M_)))
    for k in range(8):
        A("v_fma_f32 %s, %s, %s, -%s" % (v(SC_ + k), v(SC_ + k), S_C1, v(T)))
    for k in range(8):
        A("v_exp_f32 %s, %s" % (v(SC_ + k), v(SC_ + k)))
    for k in range(4):
        A("v_cvt_pk_bf16_f32 %s, %s, %s" % (v(PF + k), v(SC_ + 2 * k), v(SC_ + 2 * k + 1)))
    for j in range(8):
        A("v_mfma_f32_16x16x32_bf16 %s, %s, %s, 0" % (v(ACC + 4 * j, 4), v(PF, 4), v(VF + 4 * j, 4)))
    A("v_add_f32 %s, %s, %s" % (v(L_), v(SC_), v(SC_ + 1)))
    A("v_add_f32 %s, %s, %s" % (v(T), v(SC_ + 2), v(SC_ + 3)))
    A("v_add_f32 %s, %s, %s" % (v(T + 1), v(SC_ + 4), v(SC_ + 5)))
    A("v_add_f32 %s, %s, %s" % (v(T + 2), v(SC_ + 6), v(SC_ + 7)))
    A("v_add_f32 %s, %s, %s" % (v(L_), v(L_), v(T)))
    A("v_add_f32 %s, %s, %s" % (v(T + 1), v(T + 1), v(T + 2)))
    A("v_add_f32 %s, %s, %s" % (v(L_), v(L_), v(T + 1)))
    xrow16("v_add_f32", [L_], [T])
    xrow32("v_add_f32", [L_], [T])
    A("s_mov_b64 exec, 0xf")
    A("ds_write_b32 %s, %s" % (v(V_LST), v(M_)))
    A("ds_write_b32 %s, %s offset:64" % (v(V_LST), v(L_)))
    A("s_mov_b64 exec, -1")
    for j in range(0, 8, 2):
        A("ds_write2_b32 %s, %s, %s offset0:%d offset1:%d" % (
            v(V_LO), v(ACC + 4 * j), v(ACC + 4 * (j + 1)), j, j + 1))
    slab(S_OFF, 18, AP)
    A("s_add_u32 s75, %s, 0x%x" % (S_OFF, GDELTA))
    A("s_add_u32 %s, %s, s69" % (S_L, S_OFF))
    A("s_mov_b32 s76, 1")
    A("s_waitcnt lgkmcnt(0)")
    A("s_barrier")
    A("ds_read_b128 %s, %s" % (v(T, 4), v(V_LRS)))
    A("ds_read_b128 %s, %s offset:64" % (v(T + 4, 4), v(V_LRS)))
    for w in range(4):
        A("ds_read_b64 %s, %s offset:%d" % (v(SC_ + 2 * w, 2), v(V_LRD), 2048 * w))
    O = T + 10
    A("v_mov_b32 %s, %s" % (v(O + 1), S_NONCE))
    A("v_mov_b32 %s, %s" % (v(O + 3), S_NONCE))
    A("v_mov_b32 v125, %s" % S_NONCE)
    A("v_mov_b32 v127, %s" % S_NONCE)
    A("s_waitcnt lgkmcnt(0)")
    A("v_max3_f32 v124, %s, %s, %s" % (v(T), v(T + 1), v(T + 2)))
    A("v_max_f32 v124, v124, %s" % v(T + 3))
    for w in range(4):
        A("v_sub_f32 %s, %s, v124" % (v(T + w), v(T + w)))
    for w in range(4):
        A("v_mul_f32 %s, %s, %s" % (v(T + w), S_C1, v(T + w)))
    for w in range(4):
        A("v_exp_f32 %s, %s" % (v(T + w), v(T + w)))
    A("v_mul_f32 v126, %s, %s" % (v(T), v(T + 4)))
    A("v_mul_f32 %s, %s, %s" % (v(O), v(T), v(SC_)))
    A("v_mul_f32 %s, %s, %s" % (v(O + 2), v(T), v(SC_ + 1)))
    for w in range(1, 4):
        A("v_fmac_f32 v126, %s, %s" % (v(T + w), v(T + 4 + w)))
        A("v_fmac_f32 %s, %s, %s" % (v(O), v(T + w), v(SC_ + 2 * w)))
        A("v_fmac_f32 %s, %s, %s" % (v(O + 2), v(T + w), v(SC_ + 2 * w + 1)))
    A("buffer_store_dwordx4 %s, %s, %s, %s offen" % (v(O, 4), v(V_T16), WS, S_OFF))
    A("s_mov_b32 exec_lo, 0x01010101")
    A("s_mov_b32 exec_hi, 0x01010101")
    A("buffer_store_dwordx4 v[124:127], %s, %s, %s offen" % (v(V_PS), WS, S_OFF))
    A("s_mov_b64 exec, -1")
    def gstores():
        lg = a.newlabel("Lgst")
        A("s_cmp_eq_u32 s76, 0")
        A("s_cbranch_scc1 %s" % lg)
        A("s_mov_b32 exec_lo, 0x01010101")
        A("s_mov_b32 exec_hi, 0x01010101")
        A("buffer_store_dwordx4 v[124:127], %s, %s, s75 offen sc1" % (v(V_PS), WS))
        A("s_mov_b64 exec, -1")
        A("buffer_store_dwordx4 %s, %s, %s, s75 offen sc1" % (v(O, 4), v(V_T16), WS))
        A("s_mov_b32 s76, 0")
        a.label(lg)
    stamp(3, 4)
    lcs = a.newlabel("Lcs")
    A("s_cmp_lg_u32 %s, 0" % S_W)
    A("s_cbranch_scc1 %s" % lcs)
    CO, CS, CM = 96, 112, 116
    def loads2():
        for k in range(4):
            A("buffer_load_dwordx4 %s, %s, %s, %s offen offset:%d sc1" % (v(CO + 4 * k, 4), v(V_CO), WS, S_OFF, 1024 * k))
        A("buffer_load_dwordx4 %s, %s, %s, %s offen sc1" % (v(CS, 4), v(V_CS), WS, S_OFF))
        for k in range(4):
            A("buffer_load_dwordx2 %s, %s, %s, %s offen offset:%d sc1" % (v(CM + 2 * k, 2), v(V_CM), WS, S_OFF, 128 * k))
    poll(loads2, [CO + 2 * k + 1 for k in range(8)] + [CS + 1, CS + 3] + [CM + 2 * k + 1 for k in range(4)], 4, 5, True, gstores)
    stamp(4, 4)
    A("v_mov_b32 %s, %s" % (v(M_), v(CS)))
    slab(S_OFF, 11, OS)
    A("v_mov_b32 v5, %s" % S_NONCE)
    rowreduce("v_max_f32", [M_])
    xrow16("v_max_f32", [M_], [T])
    A("v_sub_f32 %s, %s, %s" % (v(T), v(CS), v(M_)))
    for k in range(4):
        A("v_sub_f32 %s, %s, %s" % (v(T + 4 + k), v(CM + 2 * k), v(M_)))
    A("v_mul_f32 %s, %s, %s" % (v(T), S_C1, v(T)))
    for k in range(4):
        A("v_mul_f32 %s, %s, %s" % (v(T + 4 + k), S_C1, v(T + 4 + k)))
    A("v_exp_f32 %s, %s" % (v(T), v(T)))
    for k in range(4):
        A("v_exp_f32 %s, %s" % (v(T + 4 + k), v(T + 4 + k)))
    A("v_mul_f32 %s, %s, %s" % (v(T + 3), v(T), v(CS + 2)))
    A("v_mul_f32 %s, %s, %s" % (v(T + 1), v(T + 4), v(CO)))
    A("v_mul_f32 %s, %s, %s" % (v(T + 2), v(T + 4), v(CO + 2)))
    for k in range(1, 4):
        A("v_fmac_f32 %s, %s, %s" % (v(T + 1), v(T + 4 + k), v(CO + 4 * k)))
        A("v_fmac_f32 %s, %s, %s" % (v(T + 2), v(T + 4 + k), v(CO + 4 * k + 2)))
    for r in (T + 3, T + 1, T + 2):
        A("v_add_f32_dpp %s, %s, %s row_ror:8 row_mask:0xf bank_mask:0xf" % (v(r), v(r), v(r)))
    for sh in (4, 2, 1):
        A("v_add_f32_dpp %s, %s, %s row_ror:%d row_mask:0xf bank_mask:0xf" % (v(T + 3), v(T + 3), v(T + 3), sh))
    xrow16("v_add_f32", [T + 1, T + 2, T + 3], [T + 4, T + 5, T + 6])
    xrow32("v_add_f32", [T + 1, T + 2], [T + 4, T + 5])
    A("v_rcp_f32 %s, %s" % (v(T + 3), v(T + 3)))
    A("v_mul_f32 %s, %s, %s" % (v(T + 1), v(T + 1), v(T + 3)))
    A("v_mul_f32 %s, %s, %s" % (v(T + 2), v(T + 2), v(T + 3)))
    A("v_cvt_pk_bf16_f32 v4, %s, %s" % (v(T + 1), v(T + 2)))
    A("s_mov_b64 exec, 0xff")
    publish_local("buffer_store_dwordx2", "v[4:5]", v(V_OS), S_OFF)
    A("s_mov_b64 exec, -1")
    stamp(5, 4)
    a.label(lcs)
    gstores()
    loop_tail("L_att_loop")


def role_wo():
    a.comment("================= WO role =================")
    a.label("L_wo")
    WF = 32
    OP = 64
    OF = 16
    ACC = 8
    V_W, V_O, V_XP, V_RED, V_LW, V_LR, V_OW, V_OR = 48, 49, 50, 51, 52, 53, 54, 55
    T = 96
    stamp(0)
    A("s_sub_u32 %s, s2, %d" % (S_IDX, B_WO))
    A("s_lshr_b32 %s, %s, 3" % (S_IDX, S_IDX))
    srd(SA, 12, 0x400000)
    A("v_lshlrev_b32 %s, 13, v2" % v(V_W))
    A("v_lshl_add_u32 %s, v3, 1, %s" % (v(V_W), v(V_W)))
    get_nonce_shared(T)
    slab(S_L, 11, QS)
    gate(T)
    A("s_lshl_b32 %s, %s, 19" % (S_OFF, S_G))
    A("s_lshl_b32 %s, %s, 17" % (S_T, S_W))
    A("s_add_u32 %s, %s, %s" % (S_OFF, S_OFF, S_T))
    A("s_lshl_b32 %s, %s, 5" % (S_T, S_IDX))
    A("s_add_u32 %s, %s, %s" % (S_OFF, S_OFF, S_T))
    for j in range(4):
        A("s_add_u32 %s, %s, 0x%x" % (S_T, S_OFF, 32 * j * 1024))
        A("s_add_u32 %s, %s, 4096" % (S_T2, S_T))
        for i in range(8):
            A("buffer_load_ushort %s, %s, %s, %s offen offset:%d%s" % (
                v(OP + 8 * j + i), v(V_W), SA, S_T if i < 4 else S_T2, 1024 * (i & 3), NT))
    A("v_lshlrev_b32 %s, 3, v0" % v(V_O))
    A("s_lshl_b32 %s, %s, 8" % (S_T, S_W))
    A("s_add_u32 %s, %s, 1024" % (S_T, S_T))
    A("v_lshlrev_b32 %s, 2, v1" % v(V_OW))
    A("v_add_u32 %s, %s, %s" % (v(V_OW), S_T, v(V_OW)))
    A("v_lshlrev_b32 %s, 4, v2" % v(V_OR))
    A("v_add_u32 %s, %s, %s" % (v(V_OR), S_T, v(V_OR)))
    A("s_lshl_b32 %s, %s, 7" % (S_T, S_IDX))
    A("v_lshlrev_b32 %s, 3, v3" % v(V_XP))
    A("v_add_u32 %s, %s, %s" % (v(V_XP), S_T, v(V_XP)))
    A("s_lshl_b32 %s, %s, 9" % (S_T, S_IDX))
    A("v_lshlrev_b32 %s, 3, v1" % v(V_RED))
    A("v_add_u32 %s, %s, %s" % (v(V_RED), S_T, v(V_RED)))
    A("s_lshl_b32 %s, %s, 6" % (S_T, S_W))
    A("v_lshlrev_b32 %s, 2, v3" % v(V_LR))
    A("v_add_u32 %s, %s, %s" % (v(V_LW), S_T, v(V_LR)))
    A("s_waitcnt vmcnt(0)")
    for j in range(4):
        for p in range(4):
            A("v_perm_b32 %s, %s, %s, %s" % (v(WF + 4 * j + p), v(OP + 8 * j + 2 * p + 1), v(OP + 8 * j + 2 * p), S_PLO))
    if DRY:
        set_dry()
    a.label("L_wo_loop")
    slab(S_L, 18, AP + 4096)
    gate(T)
    slab(S_L, 11, OS)
    def loads():
        A("buffer_load_dwordx2 %s, %s, %s, %s offen sc1" % (v(OP, 2), v(V_O), WS, S_OFF))
    stamp(1, 4)
    poll(loads, [OP + 1], 4, 5, True)
    stamp(2, 4)
    A("ds_write_b32 %s, %s" % (v(V_OW), v(OP)))
    A("s_waitcnt lgkmcnt(0)")
    for j in range(4):
        A("ds_read_b128 %s, %s offset:%d" % (v(OF + 4 * j, 4), v(V_OR), 64 * j))
    slab(S_OFF, 12, XP)
    A("v_mov_b32 %s, %s" % (v(T + 5), S_NONCE))
    A("s_waitcnt lgkmcnt(0)")
    for j in range(4):
        A("v_mfma_f32_16x16x32_bf16 %s, %s, %s, %s" % (
            v(ACC + 4 * (j & 1), 4), v(OF + 4 * j, 4), v(WF + 4 * j, 4), "0" if j < 2 else v(ACC + 4 * (j & 1), 4)))
    A("v_add_f32 %s, %s, %s" % (v(T), v(ACC), v(ACC + 4)))
    A("ds_write_b32 %s, %s" % (v(V_LW), v(T)))
    A("s_waitcnt lgkmcnt(0)")
    A("s_barrier")
    lsk = a.newlabel("Lwo")
    lred = a.newlabel("Lred")
    A("s_cmp_lg_u32 %s, 0" % S_W)
    A("s_cbranch_scc1 %s" % lred)
    A("s_mov_b64 exec, 0xffff")
    for w in range(4):
        A("ds_read_b32 %s, %s offset:%d" % (v(T + w), v(V_LR), 64 * w))
    A("s_waitcnt lgkmcnt(0)")
    A("v_add_f32 %s, %s, %s" % (v(T), v(T), v(T + 1)))
    A("v_add_f32 %s, %s, %s" % (v(T + 2), v(T + 2), v(T + 3)))
    A("v_add_f32 %s, %s, %s" % (v(T + 4), v(T), v(T + 2)))
    A("buffer_store_dwordx2 %s, %s, %s, %s offen sc1" % (v(T + 4, 2), v(V_XP), WS, S_OFF))
    A("s_mov_b64 exec, -1")
    stamp(3, 4)
    A("s_branch %s" % lsk)
    a.label(lred)
    A("s_cmp_lg_u32 %s, 1" % S_W)
    A("s_cbranch_scc1 %s" % lsk)
    A("s_cmp_ge_u32 %s, 8" % S_IDX)
    A("s_cbranch_scc1 %s" % lsk)
    slab(S_L, 15, FP)
    RP = 64
    def loads3():
        for fi in range(7):
            A("s_add_u32 %s, %s, 0x%x" % (S_T2, S_OFF, fi * 0x1000))
            A("buffer_load_dwordx2 %s, %s, %s, %s offen sc1" % (v(RP + 2 * fi, 2), v(V_RED), WS, S_T2))
    poll(loads3, [RP + 2 * fi + 1 for fi in range(7)], 4, 5, True)
    slab(S_OFF, 12, YP)
    A("v_add_f32 %s, %s, %s" % (v(T + 4), v(RP), v(RP + 2)))
    for fi in range(2, 7):
        A("v_add_f32 %s, %s, %s" % (v(T + 4), v(T + 4), v(RP + 2 * fi)))
    A("buffer_store_dwordx2 %s, %s, %s, %s offen sc1" % (v(T + 4, 2), v(V_RED), WS, S_OFF))
    STAMPW[0] = 1
    stamp(4, 4)
    STAMPW[0] = 0
    a.label(lsk)
    loop_tail("L_wo_loop")


def role_ffn():
    a.comment("================= FFN role =================")
    a.label("L_ffn")
    S0 = 32
    R = [40, 48, 56, 64]
    W2IN = 96
    W2F = 64
    P = 96
    XO = 30
    YF = 96
    ACC1 = 112
    ACC2 = 96
    T = 16
    VB1 = 15
    V_T4, V_T8, V_T16, V_W, VLW, VLR, VST, VRED_W, VRED_R = 5, 6, 7, 8, 9, 10, 11, 12, 13
    V_HW, V_HR, V_FP = 128, 129, 130
    XA, XB_ = 26, 27
    S_F = "s69"

    def frag(j, c):
        base = S0 if j == 0 else R[j - 1]
        return base + 4 * c

    stamp(0)
    A("s_sub_u32 %s, s2, %d" % (S_IDX, B_FFN))
    A("s_lshr_b32 %s, %s, 3" % (S_IDX, S_IDX))
    A("s_mul_i32 %s, %s, 7" % (S_F, S_G))
    A("s_add_u32 %s, %s, %s" % (S_F, S_F, S_IDX))
    A("s_lshl_b32 s68, %s, 12" % S_IDX)
    srd(SA, 16, 0x1C0000)
    srd(SB, 20, 0x1C0000)
    srd(SD, 18, 3584)
    A("v_lshlrev_b32 %s, 2, v0" % v(V_T4))
    A("v_lshlrev_b32 %s, 3, v0" % v(V_T8))
    A("v_lshlrev_b32 %s, 4, v0" % v(V_T16))
    get_nonce_shared(T)
    slab(S_L, 11, QS)
    gate(T)
    A("v_and_b32 v4, 31, v1")
    A("v_lshlrev_b32 v4, 1, v4")
    A("s_lshl_b32 %s, %s, 6" % (S_T, S_F))
    A("buffer_load_ushort %s, v4, %s, %s offen" % (v(VB1), SD, S_T))
    A("s_mov_b32 %s, %d" % (S_T, 8 * 3584))
    A("v_mul_lo_u32 %s, v2, %s" % (v(V_W), S_T))
    A("v_lshl_add_u32 %s, v3, 2, %s" % (v(V_W), v(V_W)))
    A("s_mul_i32 %s, %s, %d" % (S_OFF, S_W, 128 * 3584))
    A("s_lshl_b32 %s, %s, 6" % (S_T, S_F))
    A("s_add_u32 %s, %s, %s" % (S_OFF, S_OFF, S_T))
    for j in range(4):
        for i in range(8):
            A("s_add_u32 %s, %s, 0x%x" % (S_T, S_OFF, (32 * j + i) * 3584))
            A("buffer_load_dword %s, %s, %s, %s offen%s" % (v(R[j] + i), v(V_W), SA, S_T, NT))
    A("v_lshlrev_b32 v4, 13, v2")
    A("v_lshl_add_u32 v4, v3, 4, v4")
    A("s_lshl_b32 %s, %s, 15" % (S_OFF, S_F))
    A("s_lshl_b32 %s, %s, 8" % (S_T, S_W))
    A("s_add_u32 %s, %s, %s" % (S_OFF, S_OFF, S_T))
    A("s_add_u32 %s, %s, 4096" % (S_T2, S_OFF))
    for i in range(8):
        A("buffer_load_dwordx4 %s, v4, %s, %s offen offset:%d%s" % (
            v(W2IN + 4 * i, 4), SB, S_OFF if i < 4 else S_T2, 1024 * (i & 3), NT))
    dense_lds_addrs(VLW, VLR, VST)
    A("s_lshl_b32 %s, %s, 7" % (S_T, S_W))
    A("s_add_u32 %s, %s, %d" % (S_T, S_T, L_RED))
    A("v_lshlrev_b32 %s, 3, v3" % v(VRED_W))
    A("v_add_u32 %s, %s, %s" % (v(VRED_W), S_T, v(VRED_W)))
    A("v_and_b32 v4, 31, v1")
    A("v_lshlrev_b32 %s, 2, v4" % v(VRED_R))
    A("v_add_u32 %s, %d, %s" % (v(VRED_R), L_RED, v(VRED_R)))
    A("s_lshl_b32 %s, %s, 6" % (S_T, S_W))
    A("s_add_u32 %s, %s, %d" % (S_T, S_T, L_H))
    A("v_lshlrev_b32 %s, 1, v4" % v(V_HW))
    A("v_add_u32 %s, %s, %s" % (v(V_HW), S_T, v(V_HW)))
    A("v_lshlrev_b32 %s, 4, v2" % v(V_HR))
    A("v_add_u32 %s, %s, %s" % (v(V_HR), S_T, v(V_HR)))
    A("s_lshl_b32 %s, %s, 10" % (S_T, S_W))
    A("v_lshlrev_b32 %s, 6, v3" % v(V_FP))
    A("v_add_u32 %s, %s, %s" % (v(V_FP), S_T, v(V_FP)))
    A("s_waitcnt vmcnt(0)")
    for j in range(4):
        for p in range(4):
            Ar, Br = R[j] + 2 * p, R[j] + 2 * p + 1
            A("v_perm_b32 %s, %s, %s, %s" % (v(frag(j, 0) + p), v(Br), v(Ar), S_PLO))
            A("v_perm_b32 %s, %s, %s, %s" % (v(frag(j, 1) + p), v(Br), v(Ar), S_PHI))
    for d in range(4):
        for p in range(4):
            Ar, Br = W2IN + 4 * (2 * p) + d, W2IN + 4 * (2 * p + 1) + d
            A("v_perm_b32 %s, %s, %s, %s" % (v(W2F + 4 * (2 * d) + p), v(Br), v(Ar), S_PLO))
            A("v_perm_b32 %s, %s, %s, %s" % (v(W2F + 4 * (2 * d + 1) + p), v(Br), v(Ar), S_PHI))
    A("v_lshlrev_b32 %s, 16, %s" % (v(VB1), v(VB1)))
    if DRY:
        set_dry()
    a.label("L_ffn_loop")
    slab(S_L, 11, OS)
    gate(T)
    stamp(1, 4)
    poll_xpartials(XP, XB2, P, XO, V_T16, V_T8, T, T + 1)
    stamp(2, 4)
    sum_partials(P, XA, XB_)
    rbf16_2(XA, XB_, T + 2)
    A("v_lshlrev_b32 %s, 16, %s" % (v(T + 3), v(XO)))
    A("v_and_b32 %s, 0xffff0000, %s" % (v(T + 4), v(XO)))
    A("v_add_f32 %s, %s, %s" % (v(XA), v(XA), v(T + 3)))
    A("v_add_f32 %s, %s, %s" % (v(XB_), v(XB_), v(T + 4)))
    rbf16_2(XA, XB_, T + 2)
    lsk = a.newlabel("Lxb")
    A("s_cmp_lg_u32 %s, 0" % S_F)
    A("s_cbranch_scc1 %s" % lsk)
    A("v_mov_b32 %s, %s" % (v(XO), v(T + 2)))
    A("v_mov_b32 %s, %s" % (v(XO + 1), S_NONCE))
    A("s_add_u32 %s, %s, 0x%x" % (S_OFF, S_LB, XB1))
    A("buffer_store_dwordx2 %s, %s, %s, %s offen sc1" % (v(XO, 2), v(V_T8), WS, S_OFF))
    a.label(lsk)
    layernorm(XA, XB_, YF, T, VLW, VLR, VST)
    for j in range(4):
        for c in range(2):
            A("v_mfma_f32_16x16x32_bf16 %s, %s, %s, %s" % (
                v(ACC1 + 4 * c, 4), v(YF + 4 * j, 4), v(frag(j, c), 4), "0" if j == 0 else v(ACC1 + 4 * c, 4)))
    A("ds_write2_b32 %s, %s, %s offset0:0 offset1:1" % (v(VRED_W), v(ACC1), v(ACC1 + 4)))
    slab(S_OFF, 15, FP, "s68")
    A("s_add_u32 %s, %s, 0x%x" % (S_T2, S_OFF, GDELTA))
    A("s_waitcnt lgkmcnt(0)")
    A("s_barrier")
    for w in range(4):
        A("ds_read_b32 %s, %s offset:%d" % (v(T + w), v(VRED_R), 128 * w))
    A("s_waitcnt lgkmcnt(0)")
    A("v_add_f32 %s, %s, %s" % (v(T), v(T), v(T + 1)))
    A("v_add_f32 %s, %s, %s" % (v(T + 2), v(T + 2), v(T + 3)))
    A("v_add_f32 %s, %s, %s" % (v(T), v(T), v(T + 2)))
    rbf16_1(T)
    A("v_add_f32 %s, %s, %s" % (v(T), v(T), v(VB1)))
    rbf16_1(T)
    A("v_mul_f32 %s, %s, %s" % (v(T + 1), v(T), v(T)))
    A("v_mul_f32 %s, 0x3d372713, %s" % (v(T + 1), v(T + 1)))
    A("v_fma_f32 %s, %s, %s, %s" % (v(T + 1), v(T + 1), v(T), v(T)))
    A("v_mul_f32 %s, 0xc0135761, %s" % (v(T + 1), v(T + 1)))
    A("v_exp_f32 %s, %s" % (v(T + 1), v(T + 1)))
    A("v_add_f32 %s, 1.0, %s" % (v(T + 1), v(T + 1)))
    A("v_rcp_f32 %s, %s" % (v(T + 1), v(T + 1)))
    A("v_mul_f32 %s, %s, %s" % (v(T), v(T), v(T + 1)))
    A("v_cvt_pk_bf16_f32 %s, %s, %s" % (v(T), v(T), v(T)))
    A("ds_write_b16 %s, %s" % (v(V_HW), v(T)))
    A("s_waitcnt lgkmcnt(0)")
    A("ds_read_b128 %s, %s" % (v(T + 4, 4), v(V_HR)))
    A("s_waitcnt lgkmcnt(0)")
    for j in range(8):
        A("v_mfma_f32_16x16x32_bf16 %s, %s, %s, 0" % (v(ACC2 + 4 * j, 4), v(T + 4, 4), v(W2F + 4 * j, 4)))
    A("s_mov_b64 exec, 0xffff")
    for q in range(4):
        b = ACC2 + 8 * q
        A("v_mov_b32 %s, %s" % (v(b + 2), v(b + 4)))
        A("v_mov_b32 %s, %s" % (v(b + 1), S_NONCE))
        A("v_mov_b32 %s, %s" % (v(b + 3), S_NONCE))
        A("buffer_store_dwordx4 %s, %s, %s, %s offen offset:%d" % (v(b, 4), v(V_FP), WS, S_OFF, 16 * q))
    for q in range(4):
        b = ACC2 + 8 * q
        A("buffer_store_dwordx4 %s, %s, %s, %s offen offset:%d sc1" % (v(b, 4), v(V_FP), WS, S_T2, 16 * q))
    A("s_mov_b64 exec, -1")
    stamp(3, 4)
    loop_tail("L_ffn_loop")


def main():
    hdr = open(REF).read().split("; Override launch geometry")[0]
    a.raw(hdr.rstrip("\n"))
    a.raw("; @launch grid=(%d,1,1) block=(256,1,1) lds=20480" % NWG)
    a.raw('.amdgcn_target "amdgcn-amd-amdhsa--gfx950"')
    a.raw(".text")
    a.raw(".globl %s_kernel" % NAME)
    a.raw(".p2align 8")
    a.raw(".type %s_kernel,@function" % NAME)
    a.raw("%s_kernel:" % NAME)
    prologue()
    role_wq()
    role_att()
    role_wo()
    role_ffn()
    a.label("L_end")
    a.raw("    s_endpgm")
    a.raw('.section .rodata,"a"')
    a.raw(".p2align 6")
    a.raw(".amdhsa_kernel %s_kernel" % NAME)
    a.raw("  .amdhsa_next_free_vgpr 144")
    a.raw("  .amdhsa_next_free_sgpr 88")
    a.raw("  .amdhsa_accum_offset 144")
    a.raw("  .amdhsa_group_segment_fixed_size 0")
    a.raw("  .amdhsa_kernarg_size 104")
    a.raw("  .amdhsa_user_sgpr_count 2")
    a.raw("  .amdhsa_user_sgpr_kernarg_segment_ptr 1")
    a.raw("  .amdhsa_system_sgpr_workgroup_id_x 1")
    a.raw(".end_amdhsa_kernel")
    open(OUT, "w").write(a.text())
    print("wrote", OUT, len(a.lines), "lines")


main()
```
